```python
import torch

def _softmax(x, axis=-1):
    return torch.softmax(x, dim=axis)
def _gelu(x):
    return torch.nn.functional.gelu(x, approximate="tanh")
def _silu(x):
    return torch.nn.functional.silu(x)
def _sigmoid(x):
    return torch.sigmoid(x)
def _layernorm(x, axis=-1, eps=1e-5):
    m = x.mean(dim=axis, keepdim=True)
    v = x.var(dim=axis, keepdim=True, unbiased=False)
    return (x - m) / torch.sqrt(v + eps)
def _scatter_add(tgt, idx, src, axis=0):
    return tgt.clone().index_add_(axis, idx, src)
def _segment_sum(src, seg, n):
    out = torch.zeros((n,) + src.shape[1:], dtype=src.dtype)
    return out.index_add_(0, seg, src)
def _pad(x, pw):
    flat = tuple(v for pair in reversed(pw) for v in pair)
    return torch.nn.functional.pad(x, flat)

kernel_name = 'gated_mix__ssm_conv_s5__dense_activation_gelu__prompt'

def setup_inputs():

    _w = (lambda a: (lambda t: t.to(torch.bfloat16) if t.is_floating_point() else t)(torch.as_tensor(a)))
    def _A_setup():
        B, S, D = 1, 2048, 512
        P = D
        Lambda_re = -0.5 * (lambda _x: torch.exp(torch.as_tensor(_x)))((lambda *s: torch.randn(*s, dtype=torch.bfloat16) * 0.2)(P))
        Lambda_im = (lambda *s: torch.randn(*s, dtype=torch.bfloat16) * 0.8)(P) * 1.0
        B_re = (lambda *s: torch.randn(*s, dtype=torch.bfloat16) * 0.2)(P, D) * (D ** -0.5)
        B_im = (lambda *s: torch.randn(*s, dtype=torch.bfloat16) * 0.2)(P, D) * (D ** -0.5)
        C_re = (lambda *s: torch.randn(*s, dtype=torch.bfloat16) * 0.2)(D, P) * (P ** -0.5)
        C_im = (lambda *s: torch.randn(*s, dtype=torch.bfloat16) * 0.2)(D, P) * (P ** -0.5)
        log_dt = (lambda *s: torch.randn(*s, dtype=torch.bfloat16) * 0.2)(P) * 0.3 - 2.0
        Dskip = (lambda *s: torch.randn(*s, dtype=torch.bfloat16) * 0.05)(D)
        return {
            "x": _w((lambda *s: torch.randn(*s, dtype=torch.bfloat16) * 0.05)(B, S, D)),
            "Lambda_re": _w(Lambda_re),
            "Lambda_im": _w(Lambda_im),
            "B_re": _w(B_re),
            "B_im": _w(B_im),
            "C_re": _w(C_re),
            "C_im": _w(C_im),
            "log_dt": _w(log_dt),
            "Dskip": _w(Dskip),
        }
    _A_in = _A_setup()

    def _B_setup():
        B, S, D, F = 1, 2048, 512, 1792
        return {
            "x": _w((lambda *s: torch.randn(*s, dtype=torch.bfloat16) * 0.05)(B, S, D)),
            "w1": _w((lambda *s: torch.randn(*s, dtype=torch.bfloat16) * 3.2)(D, F) * (D ** -0.5)),
            "b1": _w((lambda *s: torch.randn(*s, dtype=torch.bfloat16) * 3.2)(F) * 0.01),
            "w2": _w((lambda *s: torch.randn(*s, dtype=torch.bfloat16) * 0.1)(F, D) * (F ** -0.5)),
            "b2": _w((lambda *s: torch.randn(*s, dtype=torch.bfloat16) * 0.2)(D) * 0.01),
        }
    _B_in = _B_setup()

    return {
        "A_x": _A_in["x"],
        "A_Lambda_re": _A_in["Lambda_re"],
        "A_Lambda_im": _A_in["Lambda_im"],
        "A_B_re": _A_in["B_re"],
        "A_B_im": _A_in["B_im"],
        "A_C_re": _A_in["C_re"],
        "A_C_im": _A_in["C_im"],
        "A_log_dt": _A_in["log_dt"],
        "A_Dskip": _A_in["Dskip"],
        "B_x": _B_in["x"],
        "B_w1": _B_in["w1"],
        "B_b1": _B_in["b1"],
        "B_w2": _B_in["w2"],
        "B_b2": _B_in["b2"],
        "gate_w": _w((lambda *s: torch.randn(*s, dtype=torch.bfloat16) * 0.05)(512) * 16.0),
    }

def reference(A_x, A_Lambda_re, A_Lambda_im, A_B_re, A_B_im, A_C_re, A_C_im, A_log_dt, A_Dskip, B_x, B_w1, B_b1, B_w2, B_b2, gate_w):
    def _A_ref(x, Lambda_re, Lambda_im, B_re, B_im, C_re, C_im, log_dt, Dskip):
        Bsz, L, H = x.shape
        Lam = Lambda_re + 1j * Lambda_im
        Bmat = B_re + 1j * B_im
        Cmat = C_re + 1j * C_im
        dt = torch.exp(log_dt)
        Lam_bar = torch.exp(dt * Lam)
        B_bar = ((Lam_bar - 1.0) / Lam)[:, None] * Bmat
        Bu = torch.einsum("bld,pd->blp", x + 0j, B_bar)
        h = torch.zeros_like(Bu[:, 0, :])
        hs = []
        for t in range(L):
            h = Lam_bar[None, :] * h + Bu[:, t, :]
            hs.append(h)
        hseq = torch.stack(hs, 1)
        y = 2.0 * torch.einsum("blp,dp->bld", hseq, Cmat).real + x * Dskip[None, None, :]
        return y

    def _B_ref(x, w1, b1, w2, b2):
        h = torch.einsum("bsd,df->bsf", x, w1) + b1
        h = _gelu(h)
        return torch.einsum("bsf,fd->bsd", h, w2) + b2

    x = A_x
    g = _sigmoid((x * gate_w).sum(-1, keepdims=True))
    a = _A_ref(x, A_Lambda_re, A_Lambda_im, A_B_re, A_B_im, A_C_re, A_C_im, A_log_dt, A_Dskip)
    b = _B_ref(x, B_w1, B_b1, B_w2, B_b2)
    return g * a + (1 - g) * b
```

```python
import sys
NAME = "gated_mix__ssm_conv_s5__dense_activation_gelu__prompt"
L = []
def e(s=""): L.append(s)
MB = 1 << 20
WS_HLRE = 0; WS_HLIM = 4 * MB; WS_A2 = 8 * MB; WS_E = 24 * MB; WS_G = 24 * MB + 65536
WS_BYTES = 32 * MB

def srd(dst, ptr_lo, nbytes):
    e(f"  s_mov_b32 s{dst}, s{ptr_lo}")
    e(f"  s_and_b32 s{dst+1}, s{ptr_lo+1}, 0xffff")
    e(f"  s_mov_b32 s{dst+2}, {nbytes}")
    e(f"  s_mov_b32 s{dst+3}, 0x00020000")

def bf16r(v, tmp=None):
    e(f"  v_cvt_pk_bf16_f32 v{v}, v{v}, v{v}")
    e(f"  v_lshlrev_b32 v{v}, 16, v{v}")

LOG2E = 1.4426950408889634
INV2PI = 0.15915494309189535

def f2u(x):
    import struct
    return struct.unpack("<I", struct.pack("<f", x))[0]

def lam_setup(vz_r, vz_i, mult, vr, vi, t0, t1):
    if mult != 1:
        e(f"  v_mul_f32 v{t0}, {float(mult)!r}, v{vz_r}") if mult in (2.0, 4.0) else (e(f"  v_mov_b32 v{t1}, 0x{f2u(float(mult)):08x}"), e(f"  v_mul_f32 v{t0}, v{t1}, v{vz_r}"))
        e(f"  v_exp_f32 v{t0}, v{t0}")
        e(f"  v_mov_b32 v{t1}, 0x{f2u(float(mult)):08x}")
        e(f"  v_mul_f32 v{t1}, v{t1}, v{vz_i}")
    else:
        e(f"  v_exp_f32 v{t0}, v{vz_r}")
        e(f"  v_mov_b32 v{t1}, v{vz_i}")
    e(f"  v_fract_f32 v{t1}, v{t1}")
    e(f"  v_cos_f32 v{vr}, v{t1}")
    e(f"  v_sin_f32 v{vi}, v{t1}")
    e("  s_nop 0")
    e(f"  v_mul_f32 v{vr}, v{vr}, v{t0}")
    e(f"  v_mul_f32 v{vi}, v{vi}, v{t0}")

def k1():
    e(".p2align 8")
    e(".globl k1_kernel")
    e(".type k1_kernel,@function")
    e("k1_kernel:")
    e("  s_cmp_ge_u32 s2, 256")
    e("  s_cbranch_scc1 K1_END")
    e("  s_load_dwordx2 s[24:25], s[0:1], 0")
    e("  s_load_dwordx2 s[26:27], s[0:1], 24")
    e("  s_load_dwordx2 s[28:29], s[0:1], 32")
    e("  s_load_dwordx2 s[30:31], s[0:1], 80")
    e("  s_load_dwordx2 s[32:33], s[0:1], 136")
    e("  v_lshrrev_b32 v1, 6, v0")
    e("  s_nop 0")
    e("  v_readfirstlane_b32 s34, v1")
    e("  s_and_b32 s35, s2, 7")
    e("  s_lshl_b32 s35, s35, 1")
    e("  s_lshr_b32 s36, s2, 3")
    e("  s_and_b32 s36, s36, 1")
    e("  s_add_u32 s35, s35, s36")
    e("  s_lshr_b32 s36, s2, 4")
    e("  s_waitcnt lgkmcnt(0)")
    srd(4, 24, 2097152)
    e("  s_cmp_lt_u32 s34, 2")
    e("  s_cselect_b32 s38, s26, s28")
    e("  s_cselect_b32 s39, s27, s29")
    srd(8, 38, 524288)
    srd(16, 30, 512 * 1792 * 2)
    srd(20, 32, WS_BYTES)
    e("  v_and_b32 v1, 63, v0")
    e("  v_lshrrev_b32 v2, 3, v1")
    e("  v_and_b32 v3, 7, v1")
    e("  v_lshrrev_b32 v4, 4, v1")
    e("  v_xor_b32 v5, v3, v4")
    e("  v_lshlrev_b32 v5, 4, v5")
    e("  v_lshl_add_u32 v10, v2, 10, v5")
    e("  v_xor_b32 v11, 64, v10")
    e("  v_and_b32 v5, 15, v1")
    e("  v_lshrrev_b32 v5, 1, v5")
    e("  v_xor_b32 v5, v5, v4")
    e("  v_lshlrev_b32 v5, 5, v5")
    e("  v_and_b32 v6, 1, v1")
    e("  v_lshl_add_u32 v5, v6, 4, v5")
    e("  s_movk_i32 s40, 3584")
    e("  v_mul_lo_u32 v6, v4, s40")
    e("  v_add_u32 v12, v5, v6")
    e("  v_xor_b32 v13, 128, v12")
    e("  s_lshl_b32 s40, s35, 17")
    e("  s_lshl_b32 s41, s34, 15")
    e("  s_add_u32 s40, s40, s41")
    e("  s_lshl_b32 s41, s36, 15")
    e("  s_and_b32 s42, s34, 1")
    e("  s_lshl_b32 s42, s42, 14")
    e("  s_add_u32 s41, s41, s42")
    e("  s_mul_i32 s42, s34, 57344")
    e("  s_mul_i32 s43, s36, 224")
    e("  s_add_u32 s42, s42, s43")
    e("  s_lshl_b32 s44, s34, 12")
    e("  s_lshl_b32 s45, s34, 11")
    e("  s_add_u32 s45, s45, 16384")
    e("  s_lshl_b32 s46, s34, 12")
    e("  s_add_u32 s46, s46, 24576")
    SLOT = 40960
    def dma(st):
        slot = (st % 3) * SLOT
        for j in range(4):
            e(f"  s_add_u32 s47, s40, {j * 8192 + st * 128}")
            e(f"  s_add_u32 m0, s44, {slot + j * 1024}"); e("  s_nop 0")
            e(f"  buffer_load_dwordx4 v{10 + (j & 1)}, s[4:7], s47 offen lds")
        for j in range(2):
            e(f"  s_add_u32 s47, s41, {j * 8192 + st * 128}")
            e(f"  s_add_u32 m0, s45, {slot + j * 1024}"); e("  s_nop 0")
            e(f"  buffer_load_dwordx4 v{10 + (j & 1)}, s[8:11], s47 offen lds")
        for j in range(4):
            e(f"  s_add_u32 s47, s42, {(st * 64 + 4 * j) * 3584}")
            e(f"  s_add_u32 m0, s46, {slot + j * 1024}"); e("  s_nop 0")
            e(f"  buffer_load_dwordx4 v{12 + (j >> 1)}, s[16:19], s47 offen lds")
    dma(0); dma(1)
    e("  v_and_b32 v5, 15, v1")
    e("  v_lshrrev_b32 v6, 1, v5")
    e("  v_xor_b32 v6, v6, v4")
    e("  v_lshlrev_b32 v6, 4, v6")
    e("  v_lshl_add_u32 v16, v5, 7, v6")
    e("  v_lshlrev_b32 v7, 12, v0")
    e("  s_lshl_b32 s47, s34, 12")
    e("  v_add_u32 v14, s47, v16")
    e("  v_xor_b32 v15, 64, v14")
    e("  v_add_u32 v16, 16384, v16")
    e("  v_xor_b32 v17, 64, v16")
    e("  v_lshrrev_b32 v5, 2, v1")
    e("  v_and_b32 v5, 3, v5")
    e("  v_and_b32 v6, 3, v1")
    e("  v_and_b32 v7, 1, v4")
    e("  v_lshl_add_u32 v7, v7, 2, v5")
    e("  v_lshl_add_u32 v5, v4, 3, v5")
    e("  v_lshlrev_b32 v5, 8, v5")
    e("  v_lshl_add_u32 v5, v6, 3, v5")
    e("  v_add_u32 v5, 24576, v5")
    for c3 in range(7):
        e(f"  v_xor_b32 v6, {c3}, v7")
        e(f"  v_lshl_add_u32 v{18 + c3}, v6, 5, v5")
    for r in range(136, 224):
        e(f"  v_mov_b32 v{r}, 0")
    ACC = lambda i2, ctile: 136 + (i2 * 11 + ctile) * 4
    FR = [32, 84]
    def reads(kk, fs):
        b = FR[fs]
        for i2 in range(2):
            e(f"  ds_read_b128 v[{b + 4 * i2}:{b + 4 * i2 + 3}], v{14 + kk} offset:{i2 * 2048}")
        for c2 in range(4):
            e(f"  ds_read_b128 v[{b + 8 + 4 * c2}:{b + 8 + 4 * c2 + 3}], v{16 + kk} offset:{c2 * 2048}")
        for c3 in range(7):
            e(f"  ds_read_b64_tr_b16 v[{b + 24 + 4 * c3}:{b + 24 + 4 * c3 + 1}], v{18 + c3} offset:{kk * 8192}")
            e(f"  ds_read_b64_tr_b16 v[{b + 24 + 4 * c3 + 2}:{b + 24 + 4 * c3 + 3}], v{18 + c3} offset:{kk * 8192 + 1024}")
    def mfmas(fs):
        b = FR[fs]
        for ctile in range(11):
            for i2 in range(2):
                a = ACC(i2, ctile)
                e(f"  v_mfma_f32_16x16x32_bf16 v[{a}:{a+3}], v[{b + 4 * i2}:{b + 4 * i2 + 3}], v[{b + 8 + 4 * ctile}:{b + 8 + 4 * ctile + 3}], v[{a}:{a+3}]")
    for st in range(8):
        e(f"  s_waitcnt vmcnt({10 if st < 7 else 0})")
        e("  s_barrier")
        if st + 2 < 8: dma(st + 2)
        if st > 0:
            d = SLOT if st % 3 != 0 else -2 * SLOT
            for r in range(14, 25):
                e(f"  v_add_u32 v{r}, {d}, v{r}")
        reads(0, 0)
        e("  s_waitcnt lgkmcnt(0)")
        reads(1, 1)
        mfmas(0)
        e("  s_waitcnt lgkmcnt(0)")
        mfmas(1)
    e("  s_nop 7"); e("  s_nop 7")
    e("  s_barrier")
    e("  v_lshlrev_b32 v5, 2, v4")
    e("  s_lshl_b32 s47, s34, 5")
    e("  v_add_u32 v5, s47, v5")
    e("  s_movk_i32 s48, 272")
    e("  v_mul_lo_u32 v5, v5, s48")
    e("  v_and_b32 v6, 15, v1")
    e("  v_lshl_add_u32 v26, v6, 2, v5")
    for i2 in range(2):
        for c2 in range(4):
            for j in range(4):
                e(f"  ds_write_b32 v26, v{ACC(i2, c2) + j} offset:{(16 * i2 + j) * 272 + 64 * c2}")
    H1S = 36864
    e("  s_load_dwordx2 s[24:25], s[0:1], 88")
    e("  s_waitcnt lgkmcnt(0)")
    srd(8, 24, 3584)
    e("  s_mul_i32 s47, s36, 224")
    e("  v_lshlrev_b32 v5, 1, v6")
    for c3 in range(7):
        e(f"  buffer_load_ushort v{32 + c3}, v5, s[8:11], s47 offen offset:{32 * c3}")
    e("  v_lshlrev_b32 v5, 2, v4")
    e("  s_lshl_b32 s47, s34, 5")
    e("  v_add_u32 v5, s47, v5")
    e("  s_movk_i32 s48, 240")
    e("  v_mul_lo_u32 v5, v5, s48")
    e("  v_lshl_add_u32 v27, v6, 1, v5")
    e("  s_waitcnt vmcnt(0)")
    for c3 in range(7):
        e(f"  v_lshlrev_b32 v{32 + c3}, 16, v{32 + c3}")
    C1 = 0.7978845608028654; C3 = 0.044715
    e(f"  v_mov_b32 v40, 0x{f2u(C3):08x}")
    e(f"  v_mov_b32 v41, 0x{f2u(-2.0 * C1 * LOG2E):08x}")
    for i2 in range(2):
        for c3 in range(7):
            for j in range(4):
                a = ACC(i2, 4 + c3) + j
                bf16r(a)
                e(f"  v_add_f32 v{a}, v{a}, v{32 + c3}")
                bf16r(a)
                e(f"  v_mul_f32 v42, v{a}, v{a}")
                e(f"  v_mul_f32 v42, v42, v40")
                e(f"  v_fma_f32 v42, v42, v{a}, v{a}")
                e(f"  v_mul_f32 v42, v42, v41")
                e(f"  v_exp_f32 v42, v42")
                e("  s_nop 0")
                e(f"  v_add_f32 v42, 1.0, v42")
                e(f"  v_rcp_f32 v42, v42")
                e("  s_nop 0")
                e(f"  v_mul_f32 v{a}, v{a}, v42")
                e(f"  v_cvt_pk_bf16_f32 v{a}, v{a}, v{a}")
                e(f"  ds_write_b16 v27, v{a} offset:{H1S + (16 * i2 + j) * 240 + 32 * c3}")
    e("  s_waitcnt lgkmcnt(0)")
    e("  s_barrier")
    e("  s_mul_i32 s47, s35, 720896")
    e("  s_mul_i32 s48, s36, 224")
    e("  s_add_u32 s47, s47, s48")
    e(f"  s_add_u32 s47, s47, {WS_A2 + 2048}")
    e("  s_mov_b32 s48, 0x12492493")
    for q in range(7):
        e(f"  v_add_u32 v5, {256 * q}, v0")
        e("  v_mul_hi_u32 v6, v5, s48")
        e("  v_mul_u32_u24 v7, 14, v6")
        e("  v_sub_u32 v7, v5, v7")
        e("  s_movk_i32 s49, 240")
        e("  v_mul_lo_u32 v8, v6, s49")
        e("  v_lshl_add_u32 v8, v7, 4, v8")
        e(f"  ds_read_b128 v[{44 + 4 * q}:{47 + 4 * q}], v8 offset:{H1S}")
        e("  s_movk_i32 s49, 5632")
        e("  v_mul_lo_u32 v8, v6, s49")
        e(f"  v_lshl_add_u32 v{72 + q}, v7, 4, v8")
    e("  s_waitcnt lgkmcnt(0)")
    for q in range(7):
        e(f"  buffer_store_dwordx4 v[{44 + 4 * q}:{47 + 4 * q}], v{72 + q}, s[20:23], s47 offen")
    e("  s_load_dwordx2 s[24:25], s[0:1], 8")
    e("  s_load_dwordx2 s[26:27], s[0:1], 16")
    e("  s_load_dwordx2 s[28:29], s[0:1], 56")
    e("  s_waitcnt lgkmcnt(0)")
    e("  v_and_b32 v2, 31, v0")
    e("  v_lshrrev_b32 v3, 5, v0")
    e("  s_lshl_b32 s47, s36, 6")
    e("  v_lshlrev_b32 v5, 1, v2")
    srd(8, 24, 1024)
    e("  buffer_load_ushort v80, v5, s[8:11], s47 offen")
    srd(8, 26, 1024)
    e("  buffer_load_ushort v81, v5, s[8:11], s47 offen")
    srd(8, 28, 1024)
    e("  buffer_load_ushort v82, v5, s[8:11], s47 offen")
    e("  s_movk_i32 s48, 4352")
    e("  v_mul_lo_u32 v5, v3, s48")
    e("  v_lshl_add_u32 v5, v2, 2, v5")
    for j in range(16):
        e(f"  ds_read_b32 v{84 + j}, v5 offset:{j * 272}")
        e(f"  ds_read_b32 v{100 + j}, v5 offset:{j * 272 + 128}")
    e("  s_waitcnt vmcnt(0)")
    e("  v_lshlrev_b32 v80, 16, v80")
    e("  v_lshlrev_b32 v81, 16, v81")
    e("  v_lshlrev_b32 v82, 16, v82")
    e(f"  v_mov_b32 v6, 0x{f2u(LOG2E):08x}")
    e("  v_mul_f32 v82, v82, v6")
    e("  v_exp_f32 v82, v82")
    e("  s_nop 0")
    bf16r(82)
    e("  v_mul_f32 v83, v82, v80")
    e("  v_mul_f32 v7, v82, v81")
    e("  v_mul_f32 v83, v83, v6")
    e(f"  v_mov_b32 v6, 0x{f2u(INV2PI):08x}")
    e("  v_mul_f32 v7, v7, v6")
    lam_setup(83, 7, 1, 116, 117, 8, 9)
    lam_setup(83, 7, 16, 118, 119, 8, 9)
    e("  v_mul_f32 v8, v80, v80")
    e("  v_fma_f32 v8, v81, v81, v8")
    e("  v_rcp_f32 v8, v8")
    e("  v_add_f32 v9, -1.0, v116")
    e("  v_mul_f32 v120, v9, v80")
    e("  v_fma_f32 v120, v117, v81, v120")
    e("  v_mul_f32 v121, v117, v80")
    e("  v_fma_f32 v121, -v9, v81, v121")
    e("  v_mul_f32 v120, v120, v8")
    e("  v_mul_f32 v121, v121, v8")
    e("  s_waitcnt lgkmcnt(0)")
    for j in range(16):
        xr = 84 + j; xi = 100 + j
        e(f"  v_mul_f32 v8, v120, v{xr}")
        e(f"  v_fma_f32 v8, -v121, v{xi}, v8")
        e(f"  v_mul_f32 v9, v120, v{xi}")
        e(f"  v_fma_f32 v9, v121, v{xr}, v9")
        if j > 0:
            e(f"  v_fma_f32 v8, v116, v{xr-1}, v8")
            e(f"  v_fma_f32 v8, -v117, v{xi-1}, v8")
            e(f"  v_fma_f32 v9, v116, v{xi-1}, v9")
            e(f"  v_fma_f32 v9, v117, v{xr-1}, v9")
        e(f"  v_mov_b32 v{xr}, v8")
        e(f"  v_mov_b32 v{xi}, v9")
    ES = 34816
    e("  v_mov_b32 v122, v99"); e("  v_mov_b32 v123, v115")
    e("  v_lshlrev_b32 v5, 3, v0")
    e(f"  ds_write_b64 v5, v[122:123] offset:{ES}")
    e("  s_waitcnt lgkmcnt(0)")
    e("  s_barrier")
    e("  v_lshlrev_b32 v5, 3, v2")
    for sp in range(7):
        e(f"  ds_read_b64 v[{44 + 2 * sp}:{45 + 2 * sp}], v5 offset:{ES + 256 * sp}")
    e("  v_mov_b32 v122, 0"); e("  v_mov_b32 v123, 0")
    e("  s_waitcnt lgkmcnt(0)")
    for sp in range(7):
        er = 44 + 2 * sp; ei = er + 1
        e(f"  v_fma_f32 v8, v118, v122, v{er}")
        e(f"  v_fma_f32 v8, -v119, v123, v8")
        e(f"  v_fma_f32 v9, v118, v123, v{ei}")
        e(f"  v_fma_f32 v9, v119, v122, v9")
        e(f"  v_cmp_lt_u32 vcc, {sp}, v3")
        e("  s_nop 1")
        e("  v_cndmask_b32 v122, v122, v8, vcc")
        e("  v_cndmask_b32 v123, v123, v9, vcc")
    e("  s_lshl_b32 s47, s35, 18")
    e("  s_lshl_b32 s48, s36, 7")
    e("  s_add_u32 s47, s47, s48")
    e("  s_add_u32 s48, s47, %d" % WS_HLIM)
    e("  v_lshlrev_b32 v5, 15, v3")
    e("  v_lshl_add_u32 v5, v2, 2, v5")
    for j in range(16):
        xr = 84 + j; xi = 100 + j
        e("  v_mul_f32 v8, v116, v122")
        e("  v_fma_f32 v8, -v117, v123, v8")
        e("  v_mul_f32 v9, v116, v123")
        e("  v_fma_f32 v123, v117, v122, v9")
        e("  v_mov_b32 v122, v8")
        e(f"  v_add_f32 v{xr}, v{xr}, v122")
        e(f"  v_add_f32 v{xi}, v{xi}, v123")
        if j % 2 == 0 and j > 0:
            e("  v_add_u32 v5, 4096, v5")
        e(f"  buffer_store_dword v{xr}, v5, s[20:23], s47 offen offset:{(j % 2) * 2048}")
        e(f"  buffer_store_dword v{xi}, v5, s[20:23], s48 offen offset:{(j % 2) * 2048}")
    e("  v_mov_b32 v122, v99"); e("  v_mov_b32 v123, v115")
    e("  s_lshl_b32 s47, s35, 12")
    e("  s_lshl_b32 s48, s36, 8")
    e("  s_add_u32 s47, s47, s48")
    e(f"  s_add_u32 s47, s47, {WS_E}")
    e("  v_lshlrev_b32 v5, 3, v2")
    e("  v_cmp_eq_u32 vcc, 7, v3")
    e("  s_and_saveexec_b64 s[50:51], vcc")
    e("  buffer_store_dwordx2 v[122:123], v5, s[20:23], s47 offen")
    e("  s_mov_b64 exec, s[50:51]")
    e("  s_load_dwordx2 s[24:25], s[0:1], 112")
    e("  s_waitcnt lgkmcnt(0)")
    srd(8, 24, 1024)
    e("  v_lshlrev_b32 v5, 5, v2")
    e("  v_lshl_add_u32 v6, v3, 10, v5")
    e("  s_lshl_b32 s47, s35, 17")
    e("  s_lshl_b32 s48, s36, 13")
    e("  s_add_u32 s47, s47, s48")
    e("  buffer_load_dwordx4 v[44:47], v6, s[4:7], s47 offen")
    e("  buffer_load_dwordx4 v[48:51], v6, s[4:7], s47 offen offset:16")
    e("  buffer_load_dwordx4 v[52:55], v5, s[8:11], 0 offen")
    e("  buffer_load_dwordx4 v[56:59], v5, s[8:11], 0 offen offset:16")
    e("  v_mov_b32 v8, 0")
    e("  s_waitcnt vmcnt(0)")
    for q in range(8):
        for h in range(2):
            if h == 0:
                e(f"  v_lshlrev_b32 v60, 16, v{44 + q}")
                e(f"  v_lshlrev_b32 v61, 16, v{52 + q}")
            else:
                e(f"  v_and_b32 v60, 0xffff0000, v{44 + q}")
                e(f"  v_and_b32 v61, 0xffff0000, v{52 + q}")
            e("  v_mul_f32 v60, v60, v61")
            bf16r(60)
            e("  v_add_f32 v8, v8, v60")
    for off in (0x041F, 0x081F, 0x101F, 0x201F, 0x401F):
        e(f"  ds_swizzle_b32 v9, v8 offset:{off}")
        e("  s_waitcnt lgkmcnt(0)")
        e("  v_add_f32 v8, v8, v9")
    bf16r(8)
    e("  v_mul_f32 v8, v8, v6") if False else None
    e(f"  v_mov_b32 v9, 0x{f2u(-LOG2E):08x}")
    e("  v_mul_f32 v8, v8, v9")
    e("  v_exp_f32 v8, v8")
    e("  s_nop 0")
    e("  v_add_f32 v8, 1.0, v8")
    e("  v_rcp_f32 v8, v8")
    e("  s_nop 0")
    bf16r(8)
    e("  s_lshl_b32 s47, s35, 9")
    e("  s_lshl_b32 s48, s36, 5")
    e("  s_add_u32 s47, s47, s48")
    e(f"  s_add_u32 s47, s47, {WS_G}")
    e("  v_lshlrev_b32 v5, 2, v3")
    e("  v_cmp_eq_u32 vcc, 0, v2")
    e("  s_and_saveexec_b64 s[50:51], vcc")
    e("  buffer_store_dword v8, v5, s[20:23], s47 offen")
    e("  s_mov_b64 exec, s[50:51]")
    e("K1_END:")
    e("  s_endpgm")

def k2():
    e(".p2align 8")
    e(".globl k2_kernel")
    e(".type k2_kernel,@function")
    e("k2_kernel:")
    e("  s_cmp_ge_u32 s2, 256")
    e("  s_cbranch_scc1 K2_END")
    e("  s_load_dwordx2 s[24:25], s[0:1], 8")
    e("  s_load_dwordx2 s[26:27], s[0:1], 16")
    e("  s_load_dwordx2 s[28:29], s[0:1], 56")
    e("  s_load_dwordx2 s[32:33], s[0:1], 136")
    e("  s_and_b32 s34, s2, 1")
    e("  s_lshr_b32 s35, s2, 1")
    e("  s_and_b32 s35, s35, 7")
    e("  s_lshr_b32 s36, s2, 4")
    e("  s_waitcnt lgkmcnt(0)")
    srd(20, 32, WS_BYTES)
    e("  s_lshl_b32 s47, s34, 8")
    e("  v_add_u32 v2, s47, v0")
    e("  v_lshlrev_b32 v5, 1, v2")
    srd(8, 24, 1024)
    e("  buffer_load_ushort v80, v5, s[8:11], 0 offen")
    srd(8, 26, 1024)
    e("  buffer_load_ushort v81, v5, s[8:11], 0 offen")
    srd(8, 28, 1024)
    e("  buffer_load_ushort v82, v5, s[8:11], 0 offen")
    e("  v_lshlrev_b32 v5, 3, v2")
    e(f"  s_mov_b32 s47, {WS_E}")
    for cp in range(15):
        e(f"  buffer_load_dwordx2 v[{84 + 2 * cp}:{85 + 2 * cp}], v5, s[20:23], s47 offen")
        e("  s_add_u32 s47, s47, 4096")
    e("  s_lshl_b32 s47, s36, 18")
    e("  s_lshl_b32 s48, s35, 15")
    e("  s_add_u32 s47, s47, s48")
    e(f"  s_add_u32 s48, s47, {WS_HLIM}")
    e("  v_lshlrev_b32 v6, 2, v2")
    e("  v_mov_b32 v7, v6")
    for j in range(16):
        if j % 2 == 0 and j > 0: e("  v_add_u32 v7, 4096, v7")
        e(f"  buffer_load_dword v{116 + j}, v7, s[20:23], s47 offen offset:{(j % 2) * 2048}")
        e(f"  buffer_load_dword v{132 + j}, v7, s[20:23], s48 offen offset:{(j % 2) * 2048}")
    e("  s_waitcnt vmcnt(32)")
    e("  v_lshlrev_b32 v80, 16, v80")
    e("  v_lshlrev_b32 v81, 16, v81")
    e("  v_lshlrev_b32 v82, 16, v82")
    e(f"  v_mov_b32 v6, 0x{f2u(LOG2E):08x}")
    e("  v_mul_f32 v82, v82, v6")
    e("  v_exp_f32 v82, v82")
    e("  s_nop 0")
    bf16r(82)
    e("  v_mul_f32 v83, v82, v80")
    e("  v_mul_f32 v3, v82, v81")
    e("  v_mul_f32 v83, v83, v6")
    e(f"  v_mov_b32 v6, 0x{f2u(INV2PI):08x}")
    e("  v_mul_f32 v3, v3, v6")
    lam_setup(83, 3, 1, 150, 151, 8, 9)
    lam_setup(83, 3, 128, 152, 153, 8, 9)
    e("  s_lshl_b32 s49, s35, 4")
    e("  v_cvt_f32_u32 v4, s49")
    e("  v_mul_f32 v10, v83, v4")
    e("  v_mul_f32 v11, v3, v4")
    lam_setup(10, 11, 1, 154, 155, 8, 9)
    e("  v_mov_b32 v156, 0"); e("  v_mov_b32 v157, 0")
    for cp in range(15):
        er = 84 + 2 * cp; ei = er + 1
        e(f"  s_cmp_lt_u32 {cp}, s36")
        e(f"  s_cbranch_scc0 K2_HD")
        e(f"  v_fma_f32 v8, v152, v156, v{er}")
        e(f"  v_fma_f32 v8, -v153, v157, v8")
        e(f"  v_fma_f32 v9, v152, v157, v{ei}")
        e(f"  v_fma_f32 v157, v153, v156, v9")
        e(f"  v_mov_b32 v156, v8")
    e("K2_HD:")
    e("  v_mul_f32 v8, v154, v156")
    e("  v_fma_f32 v8, -v155, v157, v8")
    e("  v_mul_f32 v9, v154, v157")
    e("  v_fma_f32 v157, v155, v156, v9")
    e("  v_mov_b32 v156, v8")
    e("  s_lshl_b32 s47, s36, 7")
    e("  s_lshl_b32 s48, s35, 4")
    e("  s_add_u32 s47, s47, s48")
    e("  s_mul_i32 s47, s47, 5632")
    e(f"  s_add_u32 s47, s47, {WS_A2}")
    e("  v_lshlrev_b32 v7, 1, v2")
    e("  s_waitcnt vmcnt(0)")
    for j in range(16):
        e("  v_mul_f32 v8, v150, v156")
        e("  v_fma_f32 v8, -v151, v157, v8")
        e("  v_mul_f32 v9, v150, v157")
        e("  v_fma_f32 v157, v151, v156, v9")
        e("  v_mov_b32 v156, v8")
        e(f"  v_add_f32 v{116 + j}, v{116 + j}, v156")
        e(f"  v_add_f32 v{132 + j}, v{132 + j}, v157")
        e(f"  v_sub_f32 v{132 + j}, 0, v{132 + j}")
        e(f"  v_cvt_pk_bf16_f32 v{116 + j}, v{116 + j}, v{116 + j}")
        e(f"  v_cvt_pk_bf16_f32 v{132 + j}, v{132 + j}, v{132 + j}")
        e(f"  buffer_store_short v{116 + j}, v7, s[20:23], s47 offen")
        e(f"  buffer_store_short v{132 + j}, v7, s[20:23], s47 offen offset:1024")
        e("  s_add_u32 s47, s47, 5632")
    e("K2_END:")
    e("  s_endpgm")

def k3():
    e(".p2align 8")
    e(".globl k3_kernel")
    e(".type k3_kernel,@function")
    e("k3_kernel:")
    e("  s_cmp_ge_u32 s2, 256")
    e("  s_cbranch_scc1 K3_END")
    e("  s_load_dwordx2 s[24:25], s[0:1], 40")
    e("  s_load_dwordx2 s[26:27], s[0:1], 48")
    e("  s_load_dwordx2 s[28:29], s[0:1], 96")
    e("  s_load_dwordx2 s[32:33], s[0:1], 136")
    e("  v_lshrrev_b32 v1, 6, v0")
    e("  s_nop 0")
    e("  v_readfirstlane_b32 s34, v1")
    e("  s_and_b32 s35, s2, 7")
    e("  s_lshl_b32 s35, s35, 2")
    e("  s_lshr_b32 s36, s2, 6")
    e("  s_add_u32 s35, s35, s36")
    e("  s_lshr_b32 s36, s2, 3")
    e("  s_and_b32 s36, s36, 7")
    e("  s_waitcnt lgkmcnt(0)")
    srd(8, 24, 524288); srd(12, 26, 524288); srd(16, 28, 1792 * 512 * 2); srd(20, 32, WS_BYTES)
    e("  v_and_b32 v1, 63, v0")
    e("  v_lshrrev_b32 v4, 4, v1")
    e("  v_and_b32 v5, 15, v1")
    e("  s_lshl_b32 s47, s34, 2")
    e("  v_add_u32 v6, s47, v4")
    e("  v_xor_b32 v6, v6, v5")
    e("  v_lshlrev_b32 v6, 4, v6")
    e("  s_movk_i32 s48, 5632")
    e("  v_mul_lo_u32 v7, v4, s48")
    e("  v_add_u32 v10, v6, v7")
    e("  v_lshl_add_u32 v11, v4, 10, v6")
    e("  v_lshrrev_b32 v6, 3, v1")
    e("  v_and_b32 v7, 1, v4")
    e("  v_lshlrev_b32 v7, 2, v7")
    e("  v_and_b32 v8, 7, v1")
    e("  v_xor_b32 v7, v7, v8")
    e("  v_lshlrev_b32 v7, 4, v7")
    e("  v_lshl_add_u32 v12, v6, 10, v7")
    e("  s_lshl_b32 s40, s35, 6")
    e("  s_add_u32 s40, s40, s47")
    e("  s_mul_i32 s40, s40, 5632")
    e(f"  s_add_u32 s40, s40, {WS_A2}")
    e("  s_lshl_b32 s41, s36, 6")
    e("  s_add_u32 s41, s41, s47")
    e("  s_lshl_b32 s41, s41, 10")
    e("  s_lshl_b32 s42, s34, 13")
    e("  s_lshl_b32 s43, s36, 7")
    e("  s_add_u32 s42, s42, s43")
    e("  s_lshl_b32 s44, s34, 10")
    e("  s_lshl_b32 s45, s34, 10")
    SLOT = 32768
    def dma(st):
        slot = (st % 4) * SLOT
        for j in range(4):
            e(f"  s_add_u32 s47, s40, {16 * j * 5632 + st * 256}")
            e(f"  s_add_u32 m0, s44, {slot + j * 4096}")
            e("  s_nop 0")
            e("  buffer_load_dwordx4 v10, s[20:23], s47 offen lds")
        for j in range(4):
            if st < 8:
                e(f"  s_add_u32 s47, s41, {16 * j * 1024 + (st % 4) * 256}")
                e(f"  s_add_u32 m0, s44, {slot + 16384 + j * 4096}")
                e("  s_nop 0")
                e(f"  buffer_load_dwordx4 v11, s[{8 if st < 4 else 12}:{11 if st < 4 else 15}], s47 offen lds")
            else:
                e(f"  s_add_u32 s47, s42, {(128 * (st - 8) + 32 * j) * 1024}")
                e(f"  s_add_u32 m0, s45, {slot + 16384 + j * 4096}")
                e("  s_nop 0")
                e("  buffer_load_dwordx4 v12, s[16:19], s47 offen lds")
    dma(0); dma(1); dma(2)
    e("  v_and_b32 v5, 31, v1")
    e("  v_lshrrev_b32 v6, 5, v1")
    e("  s_lshl_b32 s47, s34, 2")
    e("  v_add_u32 v6, s47, v6")
    e("  v_and_b32 v7, 15, v1")
    e("  v_xor_b32 v6, v6, v7")
    e("  v_lshlrev_b32 v6, 4, v6")
    e("  v_lshl_add_u32 v14, v5, 8, v6")
    e("  v_xor_b32 v15, 32, v14")
    e("  v_lshrrev_b32 v5, 2, v1")
    e("  v_and_b32 v5, 3, v5")
    e("  v_and_b32 v6, 3, v1")
    e("  v_lshrrev_b32 v7, 1, v4")
    e("  v_lshl_add_u32 v7, v7, 3, v5")
    e("  s_lshl_b32 s47, s34, 5")
    e("  v_add_u32 v7, s47, v7")
    e("  v_lshlrev_b32 v7, 7, v7")
    e("  v_and_b32 v8, 1, v4")
    e("  v_lshlrev_b32 v8, 1, v8")
    e("  v_lshrrev_b32 v9, 1, v6")
    e("  v_add_u32 v8, v8, v9")
    e("  v_lshrrev_b32 v9, 1, v5")
    e("  v_lshlrev_b32 v9, 2, v9")
    e("  v_xor_b32 v8, v8, v9")
    e("  v_lshl_add_u32 v7, v8, 4, v7")
    e("  v_and_b32 v9, 1, v6")
    e("  v_lshl_add_u32 v16, v9, 3, v7")
    e("  v_add_u32 v16, 16384, v16")
    e("  v_xor_b32 v17, 64, v16")
    for r in range(128, 256):
        e(f"  v_mov_b32 v{r}, 0")
    for st in range(22):
        e(f"  s_waitcnt vmcnt({16 if st < 20 else (8 if st == 20 else 0)})")
        e("  s_barrier")
        if st + 3 < 22: dma(st + 3)
        if st > 0:
            d = SLOT if st % 4 != 0 else -3 * SLOT
            for r in range(14, 18):
                e(f"  v_add_u32 v{r}, {d}, v{r}")
        base = 128 if st < 8 else 192
        for m in range(2):
            fb = 32 + 16 * m
            for a in range(2):
                e(f"  ds_read_b128 v[{fb + 4 * a}:{fb + 4 * a + 3}], v{14 + m} offset:{a * 8192}")
            for b2 in range(2):
                if st < 8:
                    e(f"  ds_read_b128 v[{fb + 8 + 4 * b2}:{fb + 8 + 4 * b2 + 3}], v{14 + m} offset:{16384 + b2 * 8192}")
                else:
                    e(f"  ds_read_b64_tr_b16 v[{fb + 8 + 4 * b2}:{fb + 8 + 4 * b2 + 1}], v{16 + b2} offset:{m * 2048}")
                    e(f"  ds_read_b64_tr_b16 v[{fb + 8 + 4 * b2 + 2}:{fb + 8 + 4 * b2 + 3}], v{16 + b2} offset:{m * 2048 + 512}")
        for m in range(2):
            fb = 32 + 16 * m
            e(f"  s_waitcnt lgkmcnt({(4 if st < 8 else 6) if m == 0 else 0})")
            for a in range(2):
                for b2 in range(2):
                    ac = base + (a * 2 + b2) * 16
                    e(f"  v_mfma_f32_32x32x16_bf16 v[{ac}:{ac+15}], v[{fb + 4 * a}:{fb + 4 * a + 3}], v[{fb + 8 + 4 * b2}:{fb + 8 + 4 * b2 + 3}], v[{ac}:{ac+15}]")
    e("  s_nop 7"); e("  s_nop 7"); e("  s_nop 7")
    e("  s_barrier")
    e("  v_lshrrev_b32 v5, 5, v1")
    e("  v_lshlrev_b32 v5, 10, v5")
    e("  v_and_b32 v6, 31, v1")
    e("  v_lshl_add_u32 v5, v6, 2, v5")
    e("  s_lshl_b32 s47, s34, 15")
    e("  v_add_u32 v5, s47, v5")
    for st_ in range(2):
        for a in range(2):
            for b2 in range(2):
                for i in range(4):
                    for j in range(4):
                        r = 128 + 64 * st_ + (a * 2 + b2) * 16 + 4 * i + j
                        e(f"  ds_write_b32 v5, v{r} offset:{st_ * 16384 + (32 * a + 8 * i + j) * 256 + 128 * b2}")
    e("  s_load_dwordx2 s[24:25], s[0:1], 0")
    e("  s_load_dwordx2 s[26:27], s[0:1], 64")
    e("  s_load_dwordx2 s[28:29], s[0:1], 104")
    e("  s_load_dwordx2 s[30:31], s[0:1], 120")
    e("  s_waitcnt lgkmcnt(0)")
    e("  s_barrier")
    srd(4, 24, 2097152); srd(8, 26, 1024); srd(12, 28, 1024); srd(16, 30, 4194304)
    e("  v_lshrrev_b32 v2, 2, v0")
    e("  v_and_b32 v3, 3, v0")
    e("  v_lshlrev_b32 v5, 5, v3")
    e("  v_lshl_add_u32 v6, v2, 10, v5")
    e("  s_lshl_b32 s47, s35, 16")
    e("  s_lshl_b32 s48, s36, 7")
    e("  s_add_u32 s47, s47, s48")
    e("  buffer_load_dwordx4 v[64:67], v6, s[4:7], s47 offen")
    e("  buffer_load_dwordx4 v[68:71], v6, s[4:7], s47 offen offset:16")
    e("  buffer_load_dwordx4 v[72:75], v5, s[8:11], s48 offen")
    e("  buffer_load_dwordx4 v[76:79], v5, s[8:11], s48 offen offset:16")
    e("  buffer_load_dwordx4 v[80:83], v5, s[12:15], s48 offen")
    e("  buffer_load_dwordx4 v[84:87], v5, s[12:15], s48 offen offset:16")
    e("  v_lshlrev_b32 v7, 2, v2")
    e("  s_lshl_b32 s49, s35, 8")
    e(f"  s_add_u32 s49, s49, {WS_G}")
    e("  buffer_load_dword v88, v7, s[20:23], s49 offen")
    e("  v_lshlrev_b32 v5, 6, v3")
    e("  v_lshl_add_u32 v5, v2, 8, v5")
    for w in range(4):
        for st_ in range(2):
            for qd in range(4):
                dst = 128 + st_ * 16 + qd * 4
                off = (w * 2 + st_) * 16384 + qd * 16
                if off > 65535:
                    e(f"  v_add_u32 v8, {off}, v5")
                    e(f"  ds_read_b128 v[{dst}:{dst+3}], v8")
                else:
                    e(f"  ds_read_b128 v[{dst}:{dst+3}], v5 offset:{off}")
            e("  s_waitcnt lgkmcnt(0)")
            for k in range(16):
                if w == 0: e(f"  v_mov_b32 v{96 + st_ * 16 + k}, v{128 + st_ * 16 + k}")
                else: e(f"  v_add_f32 v{96 + st_ * 16 + k}, v{96 + st_ * 16 + k}, v{128 + st_ * 16 + k}")
    e("  s_waitcnt vmcnt(0)")
    e("  v_sub_f32 v89, 1.0, v88")
    bf16r(89)
    for k in range(16):
        q = k // 2; h = k % 2
        for (src, dst) in ((64, 90), (72, 91), (80, 92)):
            if h == 0: e(f"  v_lshlrev_b32 v{dst}, 16, v{src + q}")
            else: e(f"  v_and_b32 v{dst}, 0xffff0000, v{src + q}")
        e("  v_mul_f32 v90, v90, v91")
        bf16r(90)
        e(f"  v_fma_f32 v90, 2.0, v{96 + k}, v90")
        e("  v_mul_f32 v90, v90, v88")
        bf16r(112 + k)
        e(f"  v_add_f32 v{112 + k}, v{112 + k}, v92")
        bf16r(112 + k)
        e(f"  v_mul_f32 v{112 + k}, v{112 + k}, v89")
        bf16r(112 + k)
        e(f"  v_add_f32 v{96 + k}, v90, v{112 + k}")
    e("  v_lshlrev_b32 v5, 6, v3")
    e("  v_lshl_add_u32 v5, v2, 11, v5")
    e("  s_lshl_b32 s47, s35, 17")
    e("  s_lshl_b32 s48, s36, 8")
    e("  s_add_u32 s47, s47, s48")
    for qd in range(4):
        e(f"  buffer_store_dwordx4 v[{96 + 4 * qd}:{99 + 4 * qd}], v5, s[16:19], s47 offen offset:{16 * qd}")
    e("K3_END:")
    e("  s_endpgm")

def kd(name, vgpr, lds_unused=0):
    e(".section .rodata,\"a\"")
    e(".p2align 6")
    e(f".amdhsa_kernel {name}")
    e(f"  .amdhsa_next_free_vgpr {vgpr}")
    e("  .amdhsa_next_free_sgpr 96")
    e(f"  .amdhsa_accum_offset {min(256, (vgpr + 3) // 4 * 4)}")
    e("  .amdhsa_group_segment_fixed_size 0")
    e("  .amdhsa_kernarg_size 144")
    e("  .amdhsa_user_sgpr_count 2")
    e("  .amdhsa_user_sgpr_kernarg_segment_ptr 1")
    e("  .amdhsa_system_sgpr_workgroup_id_x 1")
    e(".end_amdhsa_kernel")
    e(".text")

hdr = ["; @launch kernel=k1_kernel grid=(256,1,1) block=(256,1,1) lds=122880", "; @launch kernel=k2_kernel grid=(256,1,1) block=(256,1,1) lds=0", "; @launch kernel=k3_kernel grid=(256,1,1) block=(256,1,1) lds=131072"]
for h in hdr: e(h)
e('.amdgcn_target "amdgcn-amd-amdhsa--gfx950"')
e(".text")
k1()
k2()
k3()
kd("k1_kernel", 224)
kd("k2_kernel", 160)
kd("k3_kernel", 256)
print("\n".join(L))
```

```python
import sys, os
EXP = os.environ.get('EXP', '')
NAME = "gated_mix__ssm_conv_s5__dense_activation_gelu__prompt"
L = []
def e(s=""): L.append(s)
MB = 1 << 20
WS_HLRE = 0; WS_HLIM = 4 * MB; WS_A2 = 8 * MB; WS_E = 24 * MB; WS_G = 24 * MB + 65536
WS_BYTES = 32 * MB

def srd(dst, ptr_lo, nbytes):
    e(f"  s_mov_b32 s{dst}, s{ptr_lo}")
    e(f"  s_and_b32 s{dst+1}, s{ptr_lo+1}, 0xffff")
    e(f"  s_mov_b32 s{dst+2}, {nbytes}")
    e(f"  s_mov_b32 s{dst+3}, 0x00020000")

def bf16r(v, tmp=None):
    e(f"  v_cvt_pk_bf16_f32 v{v}, v{v}, v{v}")
    e(f"  v_lshlrev_b32 v{v}, 16, v{v}")

LOG2E = 1.4426950408889634
INV2PI = 0.15915494309189535

def f2u(x):
    import struct
    return struct.unpack("<I", struct.pack("<f", x))[0]

def lam_setup(vz_r, vz_i, mult, vr, vi, t0, t1):
    if mult != 1:
        e(f"  v_mul_f32 v{t0}, {float(mult)!r}, v{vz_r}") if mult in (2.0, 4.0) else (e(f"  v_mov_b32 v{t1}, 0x{f2u(float(mult)):08x}"), e(f"  v_mul_f32 v{t0}, v{t1}, v{vz_r}"))
        e(f"  v_exp_f32 v{t0}, v{t0}")
        e(f"  v_mov_b32 v{t1}, 0x{f2u(float(mult)):08x}")
        e(f"  v_mul_f32 v{t1}, v{t1}, v{vz_i}")
    else:
        e(f"  v_exp_f32 v{t0}, v{vz_r}")
        e(f"  v_mov_b32 v{t1}, v{vz_i}")
    e(f"  v_fract_f32 v{t1}, v{t1}")
    e(f"  v_cos_f32 v{vr}, v{t1}")
    e(f"  v_sin_f32 v{vi}, v{t1}")
    e("  s_nop 0")
    e(f"  v_mul_f32 v{vr}, v{vr}, v{t0}")
    e(f"  v_mul_f32 v{vi}, v{vi}, v{t0}")

def k1():
    e(".p2align 8")
    e(".globl k1_kernel")
    e(".type k1_kernel,@function")
    e("k1_kernel:")
    e("  s_cmp_ge_u32 s2, 256")
    e("  s_cbranch_scc1 K1_END")
    e("  s_load_dwordx2 s[24:25], s[0:1], 0")
    e("  s_load_dwordx2 s[26:27], s[0:1], 24")
    e("  s_load_dwordx2 s[28:29], s[0:1], 32")
    e("  s_load_dwordx2 s[30:31], s[0:1], 80")
    e("  s_load_dwordx2 s[32:33], s[0:1], 136")
    e("  v_lshrrev_b32 v1, 6, v0")
    e("  s_nop 0")
    e("  v_readfirstlane_b32 s34, v1")
    e("  s_lshr_b32 s57, s34, 2")
    e("  s_and_b32 s34, s34, 3")
    e("  s_and_b32 s35, s2, 7")
    e("  s_lshl_b32 s35, s35, 1")
    e("  s_lshr_b32 s36, s2, 3")
    e("  s_and_b32 s36, s36, 1")
    e("  s_add_u32 s35, s35, s36")
    e("  s_lshr_b32 s36, s2, 4")
    e("  s_waitcnt lgkmcnt(0)")
    srd(4, 24, 2097152)
    e("  s_cmp_lt_u32 s34, 2")
    e("  s_cselect_b32 s38, s26, s28")
    e("  s_cselect_b32 s39, s27, s29")
    srd(8, 38, 524288)
    srd(16, 30, 512 * 1792 * 2)
    srd(20, 32, WS_BYTES)
    e("  v_and_b32 v1, 63, v0")
    e("  v_lshrrev_b32 v2, 3, v1")
    e("  v_and_b32 v3, 7, v1")
    e("  v_lshrrev_b32 v4, 4, v1")
    e("  v_xor_b32 v5, v3, v4")
    e("  v_lshlrev_b32 v5, 4, v5")
    e("  v_lshl_add_u32 v10, v2, 10, v5")
    e("  v_xor_b32 v11, 64, v10")
    e("  v_and_b32 v5, 15, v1")
    e("  v_lshrrev_b32 v5, 1, v5")
    e("  v_xor_b32 v5, v5, v4")
    e("  v_lshlrev_b32 v5, 5, v5")
    e("  v_and_b32 v6, 1, v1")
    e("  v_lshl_add_u32 v5, v6, 4, v5")
    e("  s_movk_i32 s40, 3584")
    e("  v_mul_lo_u32 v6, v4, s40")
    e("  v_add_u32 v12, v5, v6")
    e("  v_xor_b32 v13, 128, v12")
    e("  s_lshl_b32 s40, s35, 17")
    e("  s_lshl_b32 s41, s34, 15")
    e("  s_add_u32 s40, s40, s41")
    e("  s_lshl_b32 s41, s36, 15")
    e("  s_and_b32 s42, s34, 1")
    e("  s_lshl_b32 s42, s42, 14")
    e("  s_add_u32 s41, s41, s42")
    e("  s_mul_i32 s42, s34, 57344")
    e("  s_mul_i32 s43, s36, 224")
    e("  s_add_u32 s42, s42, s43")
    e("  s_lshl_b32 s44, s34, 12")
    e("  s_lshl_b32 s45, s34, 11")
    e("  s_add_u32 s45, s45, 16384")
    e("  s_lshl_b32 s46, s34, 12")
    e("  s_add_u32 s46, s46, 24576")
    SLOT = 40960
    def dma(st):
        slot = (st % 3) * SLOT
        for j in range(4):
            e(f"  s_add_u32 s47, s40, {j * 8192 + st * 128}")
            e(f"  s_add_u32 m0, s44, {slot + j * 1024}"); e("  s_nop 0")
            e(f"  buffer_load_dwordx4 v{10 + (j & 1)}, s[4:7], s47 offen lds")
        for j in range(2):
            e(f"  s_add_u32 s47, s41, {j * 8192 + st * 128}")
            e(f"  s_add_u32 m0, s45, {slot + j * 1024}"); e("  s_nop 0")
            e(f"  buffer_load_dwordx4 v{10 + (j & 1)}, s[8:11], s47 offen lds")
        for j in range(4):
            e(f"  s_add_u32 s47, s42, {(st * 64 + 4 * j) * 3584}")
            e(f"  s_add_u32 m0, s46, {slot + j * 1024}"); e("  s_nop 0")
            e(f"  buffer_load_dwordx4 v{12 + (j >> 1)}, s[16:19], s47 offen lds")
    e("  v_and_b32 v5, 15, v1")
    e("  v_lshrrev_b32 v6, 1, v5")
    e("  v_xor_b32 v6, v6, v4")
    e("  v_lshlrev_b32 v6, 4, v6")
    e("  v_lshl_add_u32 v16, v5, 7, v6")
    e("  v_lshlrev_b32 v7, 12, v0")
    e("  s_lshl_b32 s47, s34, 12")
    e("  v_add_u32 v14, s47, v16")
    e("  v_xor_b32 v15, 64, v14")
    e("  v_add_u32 v16, 16384, v16")
    e("  v_xor_b32 v17, 64, v16")
    e("  v_lshrrev_b32 v5, 2, v1")
    e("  v_and_b32 v5, 3, v5")
    e("  v_and_b32 v6, 3, v1")
    e("  v_and_b32 v7, 1, v4")
    e("  v_lshl_add_u32 v7, v7, 2, v5")
    e("  v_lshl_add_u32 v5, v4, 3, v5")
    e("  v_lshlrev_b32 v5, 8, v5")
    e("  v_lshl_add_u32 v5, v6, 3, v5")
    e("  v_add_u32 v5, 24576, v5")
    for c3 in range(7):
        e(f"  v_xor_b32 v6, {c3}, v7")
        e(f"  v_lshl_add_u32 v{18 + c3}, v6, 5, v5")
    for r in range(136, 224):
        e(f"  v_mov_b32 v{r}, 0")
    ACC = lambda i2, ctile: 136 + (i2 * 11 + ctile) * 4
    FR = [32, 84]
    def reads(kk, fs):
        b = FR[fs]
        for i2 in range(2):
            e(f"  ds_read_b128 v[{b + 4 * i2}:{b + 4 * i2 + 3}], v{14 + kk} offset:{i2 * 2048}")
        for c2 in range(4):
            e(f"  ds_read_b128 v[{b + 8 + 4 * c2}:{b + 8 + 4 * c2 + 3}], v{16 + kk} offset:{c2 * 2048}")
        for c3 in range(7):
            e(f"  ds_read_b64_tr_b16 v[{b + 24 + 4 * c3}:{b + 24 + 4 * c3 + 1}], v{18 + c3} offset:{kk * 8192}")
            e(f"  ds_read_b64_tr_b16 v[{b + 24 + 4 * c3 + 2}:{b + 24 + 4 * c3 + 3}], v{18 + c3} offset:{kk * 8192 + 1024}")
    def mfmas(fs):
        b = FR[fs]
        for ctile in range(11):
            for i2 in range(2):
                a = ACC(i2, ctile)
                e(f"  v_mfma_f32_16x16x32_bf16 v[{a}:{a+3}], v[{b + 4 * i2}:{b + 4 * i2 + 3}], v[{b + 8 + 4 * ctile}:{b + 8 + 4 * ctile + 3}], v[{a}:{a+3}]")
    e("  s_cmp_eq_u32 s57, 0")
    e("  s_cbranch_scc1 K1_COMP")
    dma(0); dma(1)
    for st in range(8):
        e(f"  s_waitcnt vmcnt({10 if st < 7 else 0})")
        e("  s_barrier")
        if st + 2 < 8: dma(st + 2)
    e("  s_endpgm")
    e("K1_COMP:")
    for st in range(8):
        e("  s_barrier")
        if st > 0:
            d = SLOT if st % 3 != 0 else -2 * SLOT
            for r in range(14, 25):
                e(f"  v_add_u32 v{r}, {d}, v{r}")
        reads(0, 0)
        e("  s_waitcnt lgkmcnt(0)")
        reads(1, 1)
        mfmas(0)
        e("  s_waitcnt lgkmcnt(0)")
        mfmas(1)
    e("  s_nop 7"); e("  s_nop 7")
    e("  s_barrier")
    e("  v_lshlrev_b32 v5, 2, v4")
    e("  s_lshl_b32 s47, s34, 5")
    e("  v_add_u32 v5, s47, v5")
    e("  s_movk_i32 s48, 272")
    e("  v_mul_lo_u32 v5, v5, s48")
    e("  v_and_b32 v6, 15, v1")
    e("  v_lshl_add_u32 v26, v6, 2, v5")
    for i2 in range(2):
        for c2 in range(4):
            for j in range(4):
                e(f"  ds_write_b32 v26, v{ACC(i2, c2) + j} offset:{(16 * i2 + j) * 272 + 64 * c2}")
    H1S = 36864
    e("  s_load_dwordx2 s[24:25], s[0:1], 88")
    e("  s_waitcnt lgkmcnt(0)")
    srd(8, 24, 3584)
    e("  s_mul_i32 s47, s36, 224")
    e("  v_lshlrev_b32 v5, 1, v6")
    for c3 in range(7):
        e(f"  buffer_load_ushort v{32 + c3}, v5, s[8:11], s47 offen offset:{32 * c3}")
    e("  v_lshlrev_b32 v5, 2, v4")
    e("  s_lshl_b32 s47, s34, 5")
    e("  v_add_u32 v5, s47, v5")
    e("  s_movk_i32 s48, 240")
    e("  v_mul_lo_u32 v5, v5, s48")
    e("  v_lshl_add_u32 v27, v6, 1, v5")
    e("  s_waitcnt vmcnt(0)")
    for c3 in range(7):
        e(f"  v_lshlrev_b32 v{32 + c3}, 16, v{32 + c3}")
    C1 = 0.7978845608028654; C3 = 0.044715
    e(f"  v_mov_b32 v40, 0x{f2u(C3):08x}")
    e(f"  v_mov_b32 v41, 0x{f2u(-2.0 * C1 * LOG2E):08x}")
    for i2 in range(2):
        for c3 in range(7):
            for j in range(4):
                a = ACC(i2, 4 + c3) + j
                bf16r(a)
                e(f"  v_add_f32 v{a}, v{a}, v{32 + c3}")
                bf16r(a)
                e(f"  v_mul_f32 v42, v{a}, v{a}")
                e(f"  v_mul_f32 v42, v42, v40")
                e(f"  v_fma_f32 v42, v42, v{a}, v{a}")
                e(f"  v_mul_f32 v42, v42, v41")
                e(f"  v_exp_f32 v42, v42")
                e("  s_nop 0")
                e(f"  v_add_f32 v42, 1.0, v42")
                e(f"  v_rcp_f32 v42, v42")
                e("  s_nop 0")
                e(f"  v_mul_f32 v{a}, v{a}, v42")
                e(f"  v_cvt_pk_bf16_f32 v{a}, v{a}, v{a}")
                e(f"  ds_write_b16 v27, v{a} offset:{H1S + (16 * i2 + j) * 240 + 32 * c3}")
    e("  s_waitcnt lgkmcnt(0)")
    e("  s_barrier")
    e("  s_mul_i32 s47, s35, 720896")
    e("  s_mul_i32 s48, s36, 224")
    e("  s_add_u32 s47, s47, s48")
    e(f"  s_add_u32 s47, s47, {WS_A2 + 2048}")
    e("  s_mov_b32 s48, 0x12492493")
    for q in range(7):
        e(f"  v_add_u32 v5, {256 * q}, v0")
        e("  v_mul_hi_u32 v6, v5, s48")
        e("  v_mul_u32_u24 v7, 14, v6")
        e("  v_sub_u32 v7, v5, v7")
        e("  s_movk_i32 s49, 240")
        e("  v_mul_lo_u32 v8, v6, s49")
        e("  v_lshl_add_u32 v8, v7, 4, v8")
        e(f"  ds_read_b128 v[{44 + 4 * q}:{47 + 4 * q}], v8 offset:{H1S}")
        e("  s_movk_i32 s49, 5632")
        e("  v_mul_lo_u32 v8, v6, s49")
        e(f"  v_lshl_add_u32 v{72 + q}, v7, 4, v8")
    e("  s_waitcnt lgkmcnt(0)")
    for q in range(7):
        e(f"  buffer_store_dwordx4 v[{44 + 4 * q}:{47 + 4 * q}], v{72 + q}, s[20:23], s47 offen")
    e("  s_load_dwordx2 s[24:25], s[0:1], 8")
    e("  s_load_dwordx2 s[26:27], s[0:1], 16")
    e("  s_load_dwordx2 s[28:29], s[0:1], 56")
    e("  s_waitcnt lgkmcnt(0)")
    e("  v_and_b32 v2, 31, v0")
    e("  v_lshrrev_b32 v3, 5, v0")
    e("  s_lshl_b32 s47, s36, 6")
    e("  v_lshlrev_b32 v5, 1, v2")
    srd(8, 24, 1024)
    e("  buffer_load_ushort v80, v5, s[8:11], s47 offen")
    srd(8, 26, 1024)
    e("  buffer_load_ushort v81, v5, s[8:11], s47 offen")
    srd(8, 28, 1024)
    e("  buffer_load_ushort v82, v5, s[8:11], s47 offen")
    e("  s_movk_i32 s48, 4352")
    e("  v_mul_lo_u32 v5, v3, s48")
    e("  v_lshl_add_u32 v5, v2, 2, v5")
    for j in range(16):
        e(f"  ds_read_b32 v{84 + j}, v5 offset:{j * 272}")
        e(f"  ds_read_b32 v{100 + j}, v5 offset:{j * 272 + 128}")
    e("  s_waitcnt vmcnt(0)")
    e("  v_lshlrev_b32 v80, 16, v80")
    e("  v_lshlrev_b32 v81, 16, v81")
    e("  v_lshlrev_b32 v82, 16, v82")
    e(f"  v_mov_b32 v6, 0x{f2u(LOG2E):08x}")
    e("  v_mul_f32 v82, v82, v6")
    e("  v_exp_f32 v82, v82")
    e("  s_nop 0")
    bf16r(82)
    e("  v_mul_f32 v83, v82, v80")
    e("  v_mul_f32 v7, v82, v81")
    e("  v_mul_f32 v83, v83, v6")
    e(f"  v_mov_b32 v6, 0x{f2u(INV2PI):08x}")
    e("  v_mul_f32 v7, v7, v6")
    lam_setup(83, 7, 1, 116, 117, 8, 9)
    lam_setup(83, 7, 16, 118, 119, 8, 9)
    e("  v_mul_f32 v8, v80, v80")
    e("  v_fma_f32 v8, v81, v81, v8")
    e("  v_rcp_f32 v8, v8")
    e("  v_add_f32 v9, -1.0, v116")
    e("  v_mul_f32 v120, v9, v80")
    e("  v_fma_f32 v120, v117, v81, v120")
    e("  v_mul_f32 v121, v117, v80")
    e("  v_fma_f32 v121, -v9, v81, v121")
    e("  v_mul_f32 v120, v120, v8")
    e("  v_mul_f32 v121, v121, v8")
    e("  s_waitcnt lgkmcnt(0)")
    for j in range(16):
        xr = 84 + j; xi = 100 + j
        e(f"  v_mul_f32 v8, v120, v{xr}")
        e(f"  v_fma_f32 v8, -v121, v{xi}, v8")
        e(f"  v_mul_f32 v9, v120, v{xi}")
        e(f"  v_fma_f32 v9, v121, v{xr}, v9")
        if j > 0:
            e(f"  v_fma_f32 v8, v116, v{xr-1}, v8")
            e(f"  v_fma_f32 v8, -v117, v{xi-1}, v8")
            e(f"  v_fma_f32 v9, v116, v{xi-1}, v9")
            e(f"  v_fma_f32 v9, v117, v{xr-1}, v9")
        e(f"  v_mov_b32 v{xr}, v8")
        e(f"  v_mov_b32 v{xi}, v9")
    ES = 34816
    e("  v_mov_b32 v122, v99"); e("  v_mov_b32 v123, v115")
    e("  v_lshlrev_b32 v5, 3, v0")
    e(f"  ds_write_b64 v5, v[122:123] offset:{ES}")
    e("  s_waitcnt lgkmcnt(0)")
    e("  s_barrier")
    e("  v_lshlrev_b32 v5, 3, v2")
    for sp in range(7):
        e(f"  ds_read_b64 v[{44 + 2 * sp}:{45 + 2 * sp}], v5 offset:{ES + 256 * sp}")
    e("  v_mov_b32 v122, 0"); e("  v_mov_b32 v123, 0")
    e("  s_waitcnt lgkmcnt(0)")
    for sp in range(7):
        er = 44 + 2 * sp; ei = er + 1
        e(f"  v_fma_f32 v8, v118, v122, v{er}")
        e(f"  v_fma_f32 v8, -v119, v123, v8")
        e(f"  v_fma_f32 v9, v118, v123, v{ei}")
        e(f"  v_fma_f32 v9, v119, v122, v9")
        e(f"  v_cmp_lt_u32 vcc, {sp}, v3")
        e("  s_nop 1")
        e("  v_cndmask_b32 v122, v122, v8, vcc")
        e("  v_cndmask_b32 v123, v123, v9, vcc")
    e("  s_lshl_b32 s47, s35, 18")
    e("  s_lshl_b32 s48, s36, 7")
    e("  s_add_u32 s47, s47, s48")
    e("  s_add_u32 s48, s47, %d" % WS_HLIM)
    e("  v_lshlrev_b32 v5, 15, v3")
    e("  v_lshl_add_u32 v5, v2, 2, v5")
    for j in range(16):
        xr = 84 + j; xi = 100 + j
        e("  v_mul_f32 v8, v116, v122")
        e("  v_fma_f32 v8, -v117, v123, v8")
        e("  v_mul_f32 v9, v116, v123")
        e("  v_fma_f32 v123, v117, v122, v9")
        e("  v_mov_b32 v122, v8")
        e(f"  v_add_f32 v{xr}, v{xr}, v122")
        e(f"  v_add_f32 v{xi}, v{xi}, v123")
        if j % 2 == 0 and j > 0:
            e("  v_add_u32 v5, 4096, v5")
        e(f"  buffer_store_dword v{xr}, v5, s[20:23], s47 offen offset:{(j % 2) * 2048}")
        e(f"  buffer_store_dword v{xi}, v5, s[20:23], s48 offen offset:{(j % 2) * 2048}")
    e("  v_mov_b32 v122, v99"); e("  v_mov_b32 v123, v115")
    e("  s_lshl_b32 s47, s35, 12")
    e("  s_lshl_b32 s48, s36, 8")
    e("  s_add_u32 s47, s47, s48")
    e(f"  s_add_u32 s47, s47, {WS_E}")
    e("  v_lshlrev_b32 v5, 3, v2")
    e("  v_cmp_eq_u32 vcc, 7, v3")
    e("  s_and_saveexec_b64 s[50:51], vcc")
    e("  buffer_store_dwordx2 v[122:123], v5, s[20:23], s47 offen")
    e("  s_mov_b64 exec, s[50:51]")
    e("  s_load_dwordx2 s[24:25], s[0:1], 112")
    e("  s_waitcnt lgkmcnt(0)")
    srd(8, 24, 1024)
    e("  v_lshlrev_b32 v5, 5, v2")
    e("  v_lshl_add_u32 v6, v3, 10, v5")
    e("  s_lshl_b32 s47, s35, 17")
    e("  s_lshl_b32 s48, s36, 13")
    e("  s_add_u32 s47, s47, s48")
    e("  buffer_load_dwordx4 v[44:47], v6, s[4:7], s47 offen")
    e("  buffer_load_dwordx4 v[48:51], v6, s[4:7], s47 offen offset:16")
    e("  buffer_load_dwordx4 v[52:55], v5, s[8:11], 0 offen")
    e("  buffer_load_dwordx4 v[56:59], v5, s[8:11], 0 offen offset:16")
    e("  v_mov_b32 v8, 0")
    e("  s_waitcnt vmcnt(0)")
    for q in range(8):
        for h in range(2):
            if h == 0:
                e(f"  v_lshlrev_b32 v60, 16, v{44 + q}")
                e(f"  v_lshlrev_b32 v61, 16, v{52 + q}")
            else:
                e(f"  v_and_b32 v60, 0xffff0000, v{44 + q}")
                e(f"  v_and_b32 v61, 0xffff0000, v{52 + q}")
            e("  v_mul_f32 v60, v60, v61")
            bf16r(60)
            e("  v_add_f32 v8, v8, v60")
    for off in (0x041F, 0x081F, 0x101F, 0x201F, 0x401F):
        e(f"  ds_swizzle_b32 v9, v8 offset:{off}")
        e("  s_waitcnt lgkmcnt(0)")
        e("  v_add_f32 v8, v8, v9")
    bf16r(8)
    e("  v_mul_f32 v8, v8, v6") if False else None
    e(f"  v_mov_b32 v9, 0x{f2u(-LOG2E):08x}")
    e("  v_mul_f32 v8, v8, v9")
    e("  v_exp_f32 v8, v8")
    e("  s_nop 0")
    e("  v_add_f32 v8, 1.0, v8")
    e("  v_rcp_f32 v8, v8")
    e("  s_nop 0")
    bf16r(8)
    e("  s_lshl_b32 s47, s35, 9")
    e("  s_lshl_b32 s48, s36, 5")
    e("  s_add_u32 s47, s47, s48")
    e(f"  s_add_u32 s47, s47, {WS_G}")
    e("  v_lshlrev_b32 v5, 2, v3")
    e("  v_cmp_eq_u32 vcc, 0, v2")
    e("  s_and_saveexec_b64 s[50:51], vcc")
    e("  buffer_store_dword v8, v5, s[20:23], s47 offen")
    e("  s_mov_b64 exec, s[50:51]")
    e("K1_END:")
    e("  s_endpgm")

def k2():
    e(".p2align 8")
    e(".globl k2_kernel")
    e(".type k2_kernel,@function")
    e("k2_kernel:")
    e("  s_cmp_ge_u32 s2, 256")
    e("  s_cbranch_scc1 K2_END")
    e("  s_load_dwordx2 s[24:25], s[0:1], 8")
    e("  s_load_dwordx2 s[26:27], s[0:1], 16")
    e("  s_load_dwordx2 s[28:29], s[0:1], 56")
    e("  s_load_dwordx2 s[32:33], s[0:1], 136")
    e("  s_and_b32 s34, s2, 1")
    e("  s_lshr_b32 s35, s2, 1")
    e("  s_and_b32 s35, s35, 7")
    e("  s_lshr_b32 s36, s2, 4")
    e("  s_waitcnt lgkmcnt(0)")
    srd(20, 32, WS_BYTES)
    e("  s_lshl_b32 s47, s34, 8")
    e("  v_add_u32 v2, s47, v0")
    e("  v_lshlrev_b32 v5, 1, v2")
    srd(8, 24, 1024)
    e("  buffer_load_ushort v80, v5, s[8:11], 0 offen")
    srd(8, 26, 1024)
    e("  buffer_load_ushort v81, v5, s[8:11], 0 offen")
    srd(8, 28, 1024)
    e("  buffer_load_ushort v82, v5, s[8:11], 0 offen")
    e("  v_lshlrev_b32 v5, 3, v2")
    e(f"  s_mov_b32 s47, {WS_E}")
    for cp in range(15):
        e(f"  buffer_load_dwordx2 v[{84 + 2 * cp}:{85 + 2 * cp}], v5, s[20:23], s47 offen")
        e("  s_add_u32 s47, s47, 4096")
    e("  s_lshl_b32 s47, s36, 18")
    e("  s_lshl_b32 s48, s35, 15")
    e("  s_add_u32 s47, s47, s48")
    e(f"  s_add_u32 s48, s47, {WS_HLIM}")
    e("  v_lshlrev_b32 v6, 2, v2")
    e("  v_mov_b32 v7, v6")
    for j in range(16):
        if j % 2 == 0 and j > 0: e("  v_add_u32 v7, 4096, v7")
        e(f"  buffer_load_dword v{116 + j}, v7, s[20:23], s47 offen offset:{(j % 2) * 2048}")
        e(f"  buffer_load_dword v{132 + j}, v7, s[20:23], s48 offen offset:{(j % 2) * 2048}")
    e("  s_waitcnt vmcnt(32)")
    e("  v_lshlrev_b32 v80, 16, v80")
    e("  v_lshlrev_b32 v81, 16, v81")
    e("  v_lshlrev_b32 v82, 16, v82")
    e(f"  v_mov_b32 v6, 0x{f2u(LOG2E):08x}")
    e("  v_mul_f32 v82, v82, v6")
    e("  v_exp_f32 v82, v82")
    e("  s_nop 0")
    bf16r(82)
    e("  v_mul_f32 v83, v82, v80")
    e("  v_mul_f32 v3, v82, v81")
    e("  v_mul_f32 v83, v83, v6")
    e(f"  v_mov_b32 v6, 0x{f2u(INV2PI):08x}")
    e("  v_mul_f32 v3, v3, v6")
    lam_setup(83, 3, 1, 150, 151, 8, 9)
    lam_setup(83, 3, 128, 152, 153, 8, 9)
    e("  s_lshl_b32 s49, s35, 4")
    e("  v_cvt_f32_u32 v4, s49")
    e("  v_mul_f32 v10, v83, v4")
    e("  v_mul_f32 v11, v3, v4")
    lam_setup(10, 11, 1, 154, 155, 8, 9)
    e("  v_mov_b32 v156, 0"); e("  v_mov_b32 v157, 0")
    for cp in range(15):
        er = 84 + 2 * cp; ei = er + 1
        e(f"  s_cmp_lt_u32 {cp}, s36")
        e(f"  s_cbranch_scc0 K2_HD")
        e(f"  v_fma_f32 v8, v152, v156, v{er}")
        e(f"  v_fma_f32 v8, -v153, v157, v8")
        e(f"  v_fma_f32 v9, v152, v157, v{ei}")
        e(f"  v_fma_f32 v157, v153, v156, v9")
        e(f"  v_mov_b32 v156, v8")
    e("K2_HD:")
    e("  v_mul_f32 v8, v154, v156")
    e("  v_fma_f32 v8, -v155, v157, v8")
    e("  v_mul_f32 v9, v154, v157")
    e("  v_fma_f32 v157, v155, v156, v9")
    e("  v_mov_b32 v156, v8")
    e("  s_lshl_b32 s47, s36, 7")
    e("  s_lshl_b32 s48, s35, 4")
    e("  s_add_u32 s47, s47, s48")
    e("  s_mul_i32 s47, s47, 5632")
    e(f"  s_add_u32 s47, s47, {WS_A2}")
    e("  v_lshlrev_b32 v7, 1, v2")
    e("  s_waitcnt vmcnt(0)")
    for j in range(16):
        e("  v_mul_f32 v8, v150, v156")
        e("  v_fma_f32 v8, -v151, v157, v8")
        e("  v_mul_f32 v9, v150, v157")
        e("  v_fma_f32 v157, v151, v156, v9")
        e("  v_mov_b32 v156, v8")
        e(f"  v_add_f32 v{116 + j}, v{116 + j}, v156")
        e(f"  v_add_f32 v{132 + j}, v{132 + j}, v157")
        e(f"  v_sub_f32 v{132 + j}, 0, v{132 + j}")
        e(f"  v_cvt_pk_bf16_f32 v{116 + j}, v{116 + j}, v{116 + j}")
        e(f"  v_cvt_pk_bf16_f32 v{132 + j}, v{132 + j}, v{132 + j}")
        e(f"  buffer_store_short v{116 + j}, v7, s[20:23], s47 offen")
        e(f"  buffer_store_short v{132 + j}, v7, s[20:23], s47 offen offset:1024")
        e("  s_add_u32 s47, s47, 5632")
    e("K2_END:")
    e("  s_endpgm")

def k3():
    e(".p2align 8")
    e(".globl k3_kernel")
    e(".type k3_kernel,@function")
    e("k3_kernel:")
    e("  s_cmp_ge_u32 s2, 256")
    e("  s_cbranch_scc1 K3_END")
    e("  s_load_dwordx2 s[24:25], s[0:1], 40")
    e("  s_load_dwordx2 s[26:27], s[0:1], 48")
    e("  s_load_dwordx2 s[28:29], s[0:1], 96")
    e("  s_load_dwordx2 s[32:33], s[0:1], 136")
    e("  v_lshrrev_b32 v1, 6, v0")
    e("  s_nop 0")
    e("  v_readfirstlane_b32 s34, v1")
    e("  s_lshr_b32 s57, s34, 2")
    e("  s_and_b32 s34, s34, 3")
    e("  s_and_b32 s35, s2, 7")
    e("  s_lshl_b32 s35, s35, 2")
    e("  s_lshr_b32 s36, s2, 6")
    e("  s_add_u32 s35, s35, s36")
    e("  s_lshr_b32 s36, s2, 3")
    e("  s_and_b32 s36, s36, 7")
    e("  s_waitcnt lgkmcnt(0)")
    srd(8, 24, 524288); srd(12, 26, 524288); srd(16, 28, 1792 * 512 * 2); srd(20, 32, WS_BYTES)
    e("  v_and_b32 v1, 63, v0")
    e("  v_lshrrev_b32 v4, 4, v1")
    e("  v_and_b32 v5, 15, v1")
    e("  s_lshl_b32 s47, s34, 2")
    e("  v_add_u32 v6, s47, v4")
    e("  v_xor_b32 v6, v6, v5")
    e("  v_lshlrev_b32 v6, 4, v6")
    e("  s_movk_i32 s48, 5632")
    e("  v_mul_lo_u32 v7, v4, s48")
    e("  v_add_u32 v10, v6, v7")
    e("  v_lshl_add_u32 v11, v4, 10, v6")
    e("  v_lshrrev_b32 v6, 3, v1")
    e("  v_and_b32 v7, 1, v4")
    e("  v_lshlrev_b32 v7, 2, v7")
    e("  v_and_b32 v8, 7, v1")
    e("  v_xor_b32 v7, v7, v8")
    e("  v_lshlrev_b32 v7, 4, v7")
    e("  v_lshl_add_u32 v12, v6, 10, v7")
    e("  s_lshl_b32 s40, s35, 6")
    e("  s_add_u32 s40, s40, s47")
    e("  s_mul_i32 s40, s40, 5632")
    e(f"  s_add_u32 s40, s40, {WS_A2}")
    e("  s_lshl_b32 s41, s36, 6")
    e("  s_add_u32 s41, s41, s47")
    e("  s_lshl_b32 s41, s41, 10")
    e("  s_lshl_b32 s42, s34, 13")
    e("  s_lshl_b32 s43, s36, 7")
    e("  s_add_u32 s42, s42, s43")
    e("  s_lshl_b32 s44, s34, 10")
    e("  s_lshl_b32 s45, s34, 10")
    SLOT = 32768; NS = 5
    e("  s_lshr_b32 s52, s2, 3")
    def dma(st):
        slot = (st % NS) * SLOT
        if st < 8:
            e(f"  s_add_u32 s53, s52, {st}")
            e("  s_and_b32 s53, s53, 3")
            e("  s_lshl_b32 s53, s53, 8")
            e(f"  s_add_u32 s54, s53, {1024 if st >= 4 else 0}")
        else:
            e(f"  s_add_u32 s53, s52, {st - 8}")
            e("  s_mul_hi_u32 s54, s53, 0x12492493")
            e("  s_mul_i32 s54, s54, 14")
            e("  s_sub_u32 s53, s53, s54")
            e("  s_lshl_b32 s54, s53, 8")
            e("  s_add_u32 s54, s54, 2048")
            e("  s_lshl_b32 s53, s53, 17")
        e("  s_add_u32 s55, s40, s54")
        e("  s_add_u32 s56, s41, s53") if st < 8 else e("  s_add_u32 s56, s42, s53")
        for j in range(4):
            e(f"  s_add_u32 s47, s55, {16 * j * 5632}")
            e(f"  s_add_u32 m0, s44, {slot + j * 4096}")
            e("  s_nop 0")
            e("  buffer_load_dwordx4 v10, s[20:23], s47 offen lds")
        for j in range(4):
            if st < 8:
                e(f"  s_add_u32 s47, s56, {16 * j * 1024}")
                e(f"  s_add_u32 m0, s44, {slot + 16384 + j * 4096}")
                e("  s_nop 0")
                e(f"  buffer_load_dwordx4 v11, s[{8 if st < 4 else 12}:{11 if st < 4 else 15}], s47 offen lds")
            else:
                e(f"  s_add_u32 s47, s56, {32 * j * 1024}")
                e(f"  s_add_u32 m0, s45, {slot + 16384 + j * 4096}")
                e("  s_nop 0")
                e("  buffer_load_dwordx4 v12, s[16:19], s47 offen lds")
    e("  v_and_b32 v5, 31, v1")
    e("  v_lshrrev_b32 v6, 5, v1")
    e("  s_lshl_b32 s47, s34, 2")
    e("  v_add_u32 v6, s47, v6")
    e("  v_and_b32 v7, 15, v1")
    e("  v_xor_b32 v6, v6, v7")
    e("  v_lshlrev_b32 v6, 4, v6")
    e("  v_lshl_add_u32 v14, v5, 8, v6")
    e("  v_xor_b32 v15, 32, v14")
    e("  v_lshrrev_b32 v5, 2, v1")
    e("  v_and_b32 v5, 3, v5")
    e("  v_and_b32 v6, 3, v1")
    e("  v_lshrrev_b32 v7, 1, v4")
    e("  v_lshl_add_u32 v7, v7, 3, v5")
    e("  s_lshl_b32 s47, s34, 5")
    e("  v_add_u32 v7, s47, v7")
    e("  v_lshlrev_b32 v7, 7, v7")
    e("  v_and_b32 v8, 1, v4")
    e("  v_lshlrev_b32 v8, 1, v8")
    e("  v_lshrrev_b32 v9, 1, v6")
    e("  v_add_u32 v8, v8, v9")
    e("  v_lshrrev_b32 v9, 1, v5")
    e("  v_lshlrev_b32 v9, 2, v9")
    e("  v_xor_b32 v8, v8, v9")
    e("  v_lshl_add_u32 v7, v8, 4, v7")
    e("  v_and_b32 v9, 1, v6")
    e("  v_lshl_add_u32 v16, v9, 3, v7")
    e("  v_add_u32 v16, 16384, v16")
    e("  v_xor_b32 v17, 64, v16")
    for r in range(128, 256):
        e(f"  v_mov_b32 v{r}, 0")
    def freads(st, fs):
        for m in range(2):
            fb = 32 + 32 * fs + 16 * m
            for a in range(2):
                e(f"  ds_read_b128 v[{fb + 4 * a}:{fb + 4 * a + 3}], v{14 + m} offset:{a * 8192}")
            for b2 in range(2):
                if st < 8:
                    e(f"  ds_read_b128 v[{fb + 8 + 4 * b2}:{fb + 8 + 4 * b2 + 3}], v{14 + m} offset:{16384 + b2 * 8192}")
                else:
                    e(f"  ds_read_b64_tr_b16 v[{fb + 8 + 4 * b2}:{fb + 8 + 4 * b2 + 1}], v{16 + b2} offset:{m * 2048}")
                    e(f"  ds_read_b64_tr_b16 v[{fb + 8 + 4 * b2 + 2}:{fb + 8 + 4 * b2 + 3}], v{16 + b2} offset:{m * 2048 + 512}")
    def adv(st):
        d = SLOT if st % NS != 0 else -(NS - 1) * SLOT
        for r in range(14, 18):
            e(f"  v_add_u32 v{r}, {d}, v{r}")
    e("  s_cmp_eq_u32 s57, 0")
    e("  s_cbranch_scc1 K3_COMP")
    dma(0); dma(1); dma(2); dma(3)
    e("  s_waitcnt vmcnt(24)")
    e("  s_barrier")
    for st in range(21):
        rem = min(22, st + 4) - (st + 2)
        e(f"  s_waitcnt vmcnt({8 * max(rem, 0)})")
        e("  s_barrier")
        if st + 4 < 22: dma(st + 4)
    e("  s_endpgm")
    e("K3_COMP:")
    e("  s_barrier")
    freads(0, 0)
    for st in range(22):
        if st + 1 < 22:
            e("  s_waitcnt lgkmcnt(0)")
            e("  s_barrier")
            adv(st + 1)
            freads(st + 1, (st + 1) & 1)
        else:
            e("  s_waitcnt lgkmcnt(0)")
        base = 128 if st < 8 else 192
        for m in range(2):
            fb = 32 + 32 * (st & 1) + 16 * m
            for a in range(2):
                for b2 in range(2):
                    ac = base + (a * 2 + b2) * 16
                    e(f"  v_mfma_f32_32x32x16_bf16 v[{ac}:{ac+15}], v[{fb + 4 * a}:{fb + 4 * a + 3}], v[{fb + 8 + 4 * b2}:{fb + 8 + 4 * b2 + 3}], v[{ac}:{ac+15}]")
    e("  s_nop 7"); e("  s_nop 7"); e("  s_nop 7")
    e("  s_barrier")
    e("  v_lshrrev_b32 v5, 5, v1")
    e("  v_lshlrev_b32 v5, 10, v5")
    e("  v_and_b32 v6, 31, v1")
    e("  v_lshl_add_u32 v5, v6, 2, v5")
    e("  s_lshl_b32 s47, s34, 15")
    e("  v_add_u32 v5, s47, v5")
    for st_ in range(2):
        for a in range(2):
            for b2 in range(2):
                for i in range(4):
                    for j in range(4):
                        r = 128 + 64 * st_ + (a * 2 + b2) * 16 + 4 * i + j
                        e(f"  ds_write_b32 v5, v{r} offset:{st_ * 16384 + (32 * a + 8 * i + j) * 256 + 128 * b2}")
    e("  s_load_dwordx2 s[24:25], s[0:1], 0")
    e("  s_load_dwordx2 s[26:27], s[0:1], 64")
    e("  s_load_dwordx2 s[28:29], s[0:1], 104")
    e("  s_load_dwordx2 s[30:31], s[0:1], 120")
    e("  s_waitcnt lgkmcnt(0)")
    e("  s_barrier")
    srd(4, 24, 2097152); srd(8, 26, 1024); srd(12, 28, 1024); srd(16, 30, 4194304)
    e("  v_lshrrev_b32 v2, 2, v0")
    e("  v_and_b32 v3, 3, v0")
    e("  v_lshlrev_b32 v5, 5, v3")
    e("  v_lshl_add_u32 v6, v2, 10, v5")
    e("  s_lshl_b32 s47, s35, 16")
    e("  s_lshl_b32 s48, s36, 7")
    e("  s_add_u32 s47, s47, s48")
    e("  buffer_load_dwordx4 v[64:67], v6, s[4:7], s47 offen")
    e("  buffer_load_dwordx4 v[68:71], v6, s[4:7], s47 offen offset:16")
    e("  buffer_load_dwordx4 v[72:75], v5, s[8:11], s48 offen")
    e("  buffer_load_dwordx4 v[76:79], v5, s[8:11], s48 offen offset:16")
    e("  buffer_load_dwordx4 v[80:83], v5, s[12:15], s48 offen")
    e("  buffer_load_dwordx4 v[84:87], v5, s[12:15], s48 offen offset:16")
    e("  v_lshlrev_b32 v7, 2, v2")
    e("  s_lshl_b32 s49, s35, 8")
    e(f"  s_add_u32 s49, s49, {WS_G}")
    e("  buffer_load_dword v88, v7, s[20:23], s49 offen")
    e("  v_lshlrev_b32 v5, 6, v3")
    e("  v_lshl_add_u32 v5, v2, 8, v5")
    for w in range(4):
        for st_ in range(2):
            for qd in range(4):
                dst = 128 + st_ * 16 + qd * 4
                off = (w * 2 + st_) * 16384 + qd * 16
                if off > 65535:
                    e(f"  v_add_u32 v8, {off}, v5")
                    e(f"  ds_read_b128 v[{dst}:{dst+3}], v8")
                else:
                    e(f"  ds_read_b128 v[{dst}:{dst+3}], v5 offset:{off}")
            e("  s_waitcnt lgkmcnt(0)")
            for k in range(16):
                if w == 0: e(f"  v_mov_b32 v{96 + st_ * 16 + k}, v{128 + st_ * 16 + k}")
                else: e(f"  v_add_f32 v{96 + st_ * 16 + k}, v{96 + st_ * 16 + k}, v{128 + st_ * 16 + k}")
    e("  s_waitcnt vmcnt(0)")
    e("  v_sub_f32 v89, 1.0, v88")
    bf16r(89)
    for k in range(16):
        q = k // 2; h = k % 2
        for (src, dst) in ((64, 90), (72, 91), (80, 92)):
            if h == 0: e(f"  v_lshlrev_b32 v{dst}, 16, v{src + q}")
            else: e(f"  v_and_b32 v{dst}, 0xffff0000, v{src + q}")
        e("  v_mul_f32 v90, v90, v91")
        bf16r(90)
        e(f"  v_fma_f32 v90, 2.0, v{96 + k}, v90")
        e("  v_mul_f32 v90, v90, v88")
        bf16r(112 + k)
        e(f"  v_add_f32 v{112 + k}, v{112 + k}, v92")
        bf16r(112 + k)
        e(f"  v_mul_f32 v{112 + k}, v{112 + k}, v89")
        bf16r(112 + k)
        e(f"  v_add_f32 v{96 + k}, v90, v{112 + k}")
    e("  v_lshlrev_b32 v5, 6, v3")
    e("  v_lshl_add_u32 v5, v2, 11, v5")
    e("  s_lshl_b32 s47, s35, 17")
    e("  s_lshl_b32 s48, s36, 8")
    e("  s_add_u32 s47, s47, s48")
    for qd in range(4):
        e(f"  buffer_store_dwordx4 v[{96 + 4 * qd}:{99 + 4 * qd}], v5, s[16:19], s47 offen offset:{16 * qd}")
    e("K3_END:")
    e("  s_endpgm")

def kd(name, vgpr, lds_unused=0):
    e(".section .rodata,\"a\"")
    e(".p2align 6")
    e(f".amdhsa_kernel {name}")
    e(f"  .amdhsa_next_free_vgpr {vgpr}")
    e("  .amdhsa_next_free_sgpr 96")
    e(f"  .amdhsa_accum_offset {min(256, (vgpr + 3) // 4 * 4)}")
    e("  .amdhsa_group_segment_fixed_size 0")
    e("  .amdhsa_kernarg_size 144")
    e("  .amdhsa_user_sgpr_count 2")
    e("  .amdhsa_user_sgpr_kernarg_segment_ptr 1")
    e("  .amdhsa_system_sgpr_workgroup_id_x 1")
    e(".end_amdhsa_kernel")
    e(".text")

hdr = ["; @launch kernel=k1_kernel grid=(256,1,1) block=(512,1,1) lds=122880", "; @launch kernel=k2_kernel grid=(256,1,1) block=(256,1,1) lds=0", "; @launch kernel=k3_kernel grid=(256,1,1) block=(512,1,1) lds=163840"]
for h in hdr: e(h)
e('.amdgcn_target "amdgcn-amd-amdhsa--gfx950"')
e(".text")
k1()
k2()
k3()
kd("k1_kernel", 224)
kd("k2_kernel", 160)
kd("k3_kernel", 256)
print("\n".join(L))
```

```python
import sys, os
EXP = os.environ.get('EXP', '')
NAME = "gated_mix__ssm_conv_s5__dense_activation_gelu__prompt"
L = []
def e(s=""): L.append(s)
MB = 1 << 20
WS_HLRE = 0; WS_HLIM = 4 * MB; WS_A2 = 8 * MB; WS_E = 24 * MB; WS_G = 24 * MB + 65536
WS_BYTES = 32 * MB

def srd(dst, ptr_lo, nbytes):
    e(f"  s_mov_b32 s{dst}, s{ptr_lo}")
    e(f"  s_and_b32 s{dst+1}, s{ptr_lo+1}, 0xffff")
    e(f"  s_mov_b32 s{dst+2}, {nbytes}")
    e(f"  s_mov_b32 s{dst+3}, 0x00020000")

def bf16r(v, tmp=None):
    e(f"  v_cvt_pk_bf16_f32 v{v}, v{v}, v{v}")
    e(f"  v_lshlrev_b32 v{v}, 16, v{v}")

STAMP = os.environ.get('STAMP', '') == '1'
_stamp_n = [0]
def stamp():
    if not STAMP: return
    i = _stamp_n[0]; _stamp_n[0] += 1
    e(f"  s_memtime s[{60 + 2 * i}:{61 + 2 * i}]")
def stamp_flush(n):
    if not STAMP: return
    e("  s_waitcnt lgkmcnt(0)")
    e("  s_load_dwordx2 s[24:25], s[0:1], 128")
    e("  s_waitcnt lgkmcnt(0)")
    srd(8, 24, 256)
    e("  s_cmp_lg_u32 s2, 5")
    e("  s_cbranch_scc1 STF_%d" % n)
    e("  v_cmp_eq_u32 vcc, 0, v0")
    e("  s_and_saveexec_b64 s[50:51], vcc")
    for i in range(_stamp_n[0]):
        e(f"  s_sub_u32 s47, s{60 + 2 * i}, s60")
        e(f"  v_mov_b32 v5, s47")
        e(f"  v_mov_b32 v6, {4 * i}")
        e("  buffer_store_dword v5, v6, s[8:11], 0 offen")
    e("  s_mov_b64 exec, s[50:51]")
    e("STF_%d:" % n)
    _stamp_n[0] = 0

LOG2E = 1.4426950408889634
INV2PI = 0.15915494309189535

def f2u(x):
    import struct
    return struct.unpack("<I", struct.pack("<f", x))[0]

def lam_setup(vz_r, vz_i, mult, vr, vi, t0, t1):
    if mult != 1:
        e(f"  v_mul_f32 v{t0}, {float(mult)!r}, v{vz_r}") if mult in (2.0, 4.0) else (e(f"  v_mov_b32 v{t1}, 0x{f2u(float(mult)):08x}"), e(f"  v_mul_f32 v{t0}, v{t1}, v{vz_r}"))
        e(f"  v_exp_f32 v{t0}, v{t0}")
        e(f"  v_mov_b32 v{t1}, 0x{f2u(float(mult)):08x}")
        e(f"  v_mul_f32 v{t1}, v{t1}, v{vz_i}")
    else:
        e(f"  v_exp_f32 v{t0}, v{vz_r}")
        e(f"  v_mov_b32 v{t1}, v{vz_i}")
    e(f"  v_fract_f32 v{t1}, v{t1}")
    e(f"  v_cos_f32 v{vr}, v{t1}")
    e(f"  v_sin_f32 v{vi}, v{t1}")
    e("  s_nop 0")
    e(f"  v_mul_f32 v{vr}, v{vr}, v{t0}")
    e(f"  v_mul_f32 v{vi}, v{vi}, v{t0}")

def k1():
    e(".p2align 8")
    e(".globl k1_kernel")
    e(".type k1_kernel,@function")
    e("k1_kernel:")
    e("  s_cmp_ge_u32 s2, 256")
    e("  s_cbranch_scc1 K1_END")
    stamp()
    e("  s_load_dwordx2 s[24:25], s[0:1], 0")
    e("  s_load_dwordx2 s[26:27], s[0:1], 24")
    e("  s_load_dwordx2 s[28:29], s[0:1], 32")
    e("  s_load_dwordx2 s[30:31], s[0:1], 80")
    e("  s_load_dwordx2 s[32:33], s[0:1], 136")
    e("  v_lshrrev_b32 v1, 6, v0")
    e("  s_nop 0")
    e("  v_readfirstlane_b32 s34, v1")
    e("  s_lshr_b32 s57, s34, 2")
    e("  s_and_b32 s34, s34, 3")
    e("  s_and_b32 s35, s2, 7")
    e("  s_lshl_b32 s35, s35, 1")
    e("  s_lshr_b32 s36, s2, 3")
    e("  s_and_b32 s36, s36, 1")
    e("  s_add_u32 s35, s35, s36")
    e("  s_lshr_b32 s36, s2, 4")
    e("  s_waitcnt lgkmcnt(0)")
    srd(4, 24, 2097152)
    e("  s_cmp_lt_u32 s34, 2")
    e("  s_cselect_b32 s38, s26, s28")
    e("  s_cselect_b32 s39, s27, s29")
    srd(8, 38, 524288)
    srd(16, 30, 512 * 1792 * 2)
    srd(20, 32, WS_BYTES)
    e("  v_and_b32 v1, 63, v0")
    e("  v_lshrrev_b32 v2, 3, v1")
    e("  v_and_b32 v3, 7, v1")
    e("  v_lshrrev_b32 v4, 4, v1")
    e("  v_xor_b32 v5, v3, v4")
    e("  v_lshlrev_b32 v5, 4, v5")
    e("  v_lshl_add_u32 v10, v2, 10, v5")
    e("  v_xor_b32 v11, 64, v10")
    e("  v_and_b32 v5, 15, v1")
    e("  v_lshrrev_b32 v5, 1, v5")
    e("  v_xor_b32 v5, v5, v4")
    e("  v_lshlrev_b32 v5, 5, v5")
    e("  v_and_b32 v6, 1, v1")
    e("  v_lshl_add_u32 v5, v6, 4, v5")
    e("  s_movk_i32 s40, 3584")
    e("  v_mul_lo_u32 v6, v4, s40")
    e("  v_add_u32 v12, v5, v6")
    e("  v_xor_b32 v13, 128, v12")
    e("  s_lshl_b32 s40, s35, 17")
    e("  s_lshl_b32 s41, s34, 15")
    e("  s_add_u32 s40, s40, s41")
    e("  s_lshl_b32 s41, s36, 15")
    e("  s_and_b32 s42, s34, 1")
    e("  s_lshl_b32 s42, s42, 14")
    e("  s_add_u32 s41, s41, s42")
    e("  s_mul_i32 s42, s34, 57344")
    e("  s_mul_i32 s43, s36, 224")
    e("  s_add_u32 s42, s42, s43")
    e("  s_lshl_b32 s44, s34, 12")
    e("  s_lshl_b32 s45, s34, 11")
    e("  s_add_u32 s45, s45, 16384")
    e("  s_lshl_b32 s46, s34, 12")
    e("  s_add_u32 s46, s46, 24576")
    SLOT = 40960
    def dma(st):
        slot = (st % 3) * SLOT
        for j in range(4):
            e(f"  s_add_u32 s47, s40, {j * 8192 + st * 128}")
            e(f"  s_add_u32 m0, s44, {slot + j * 1024}"); e("  s_nop 0")
            e(f"  buffer_load_dwordx4 v{10 + (j & 1)}, s[4:7], s47 offen lds")
        for j in range(2):
            e(f"  s_add_u32 s47, s41, {j * 8192 + st * 128}")
            e(f"  s_add_u32 m0, s45, {slot + j * 1024}"); e("  s_nop 0")
            e(f"  buffer_load_dwordx4 v{10 + (j & 1)}, s[8:11], s47 offen lds")
        for j in range(4):
            e(f"  s_add_u32 s47, s42, {(st * 64 + 4 * j) * 3584}")
            e(f"  s_add_u32 m0, s46, {slot + j * 1024}"); e("  s_nop 0")
            e(f"  buffer_load_dwordx4 v{12 + (j >> 1)}, s[16:19], s47 offen lds")
    e("  v_and_b32 v5, 15, v1")
    e("  v_lshrrev_b32 v6, 1, v5")
    e("  v_xor_b32 v6, v6, v4")
    e("  v_lshlrev_b32 v6, 4, v6")
    e("  v_lshl_add_u32 v16, v5, 7, v6")
    e("  v_lshlrev_b32 v7, 12, v0")
    e("  s_lshl_b32 s47, s34, 12")
    e("  v_add_u32 v14, s47, v16")
    e("  v_xor_b32 v15, 64, v14")
    e("  v_add_u32 v16, 16384, v16")
    e("  v_xor_b32 v17, 64, v16")
    e("  v_lshrrev_b32 v5, 2, v1")
    e("  v_and_b32 v5, 3, v5")
    e("  v_and_b32 v6, 3, v1")
    e("  v_and_b32 v7, 1, v4")
    e("  v_lshl_add_u32 v7, v7, 2, v5")
    e("  v_lshl_add_u32 v5, v4, 3, v5")
    e("  v_lshlrev_b32 v5, 8, v5")
    e("  v_lshl_add_u32 v5, v6, 3, v5")
    e("  v_add_u32 v5, 24576, v5")
    for c3 in range(7):
        e(f"  v_xor_b32 v6, {c3}, v7")
        e(f"  v_lshl_add_u32 v{18 + c3}, v6, 5, v5")
    for r in range(136, 224):
        e(f"  v_mov_b32 v{r}, 0")
    ACC = lambda i2, ctile: 136 + (i2 * 11 + ctile) * 4
    FR = [32, 84]
    def reads(kk, fs):
        b = FR[fs]
        for i2 in range(2):
            e(f"  ds_read_b128 v[{b + 4 * i2}:{b + 4 * i2 + 3}], v{14 + kk} offset:{i2 * 2048}")
        for c2 in range(4):
            e(f"  ds_read_b128 v[{b + 8 + 4 * c2}:{b + 8 + 4 * c2 + 3}], v{16 + kk} offset:{c2 * 2048}")
        for c3 in range(7):
            e(f"  ds_read_b64_tr_b16 v[{b + 24 + 4 * c3}:{b + 24 + 4 * c3 + 1}], v{18 + c3} offset:{kk * 8192}")
            e(f"  ds_read_b64_tr_b16 v[{b + 24 + 4 * c3 + 2}:{b + 24 + 4 * c3 + 3}], v{18 + c3} offset:{kk * 8192 + 1024}")
    def mfmas(fs):
        b = FR[fs]
        for ctile in range(11):
            for i2 in range(2):
                a = ACC(i2, ctile)
                e(f"  v_mfma_f32_16x16x32_bf16 v[{a}:{a+3}], v[{b + 4 * i2}:{b + 4 * i2 + 3}], v[{b + 8 + 4 * ctile}:{b + 8 + 4 * ctile + 3}], v[{a}:{a+3}]")
    e("  s_cmp_eq_u32 s57, 0")
    e("  s_cbranch_scc1 K1_COMP")
    e("  v_subrev_u32 v0, 256, v0")
    e("  s_load_dwordx2 s[24:25], s[0:1], 8")
    e("  s_load_dwordx2 s[26:27], s[0:1], 16")
    e("  s_load_dwordx2 s[28:29], s[0:1], 56")
    e("  s_waitcnt lgkmcnt(0)")
    e("  v_and_b32 v2, 31, v0")
    e("  v_lshrrev_b32 v3, 5, v0")
    e("  s_lshl_b32 s47, s36, 6")
    e("  v_lshlrev_b32 v5, 1, v2")
    srd(8, 24, 1024)
    e("  buffer_load_ushort v80, v5, s[8:11], s47 offen")
    srd(8, 26, 1024)
    e("  buffer_load_ushort v81, v5, s[8:11], s47 offen")
    srd(8, 28, 1024)
    e("  buffer_load_ushort v82, v5, s[8:11], s47 offen")

    e("  s_load_dwordx2 s[24:25], s[0:1], 112")
    e("  s_waitcnt lgkmcnt(0)")
    srd(8, 24, 1024)
    e("  v_lshlrev_b32 v5, 5, v2")
    e("  v_lshl_add_u32 v6, v3, 10, v5")
    e("  s_lshl_b32 s47, s35, 17")
    e("  s_lshl_b32 s48, s36, 13")
    e("  s_add_u32 s47, s47, s48")
    e("  buffer_load_dwordx4 v[44:47], v6, s[4:7], s47 offen")
    e("  buffer_load_dwordx4 v[48:51], v6, s[4:7], s47 offen offset:16")
    e("  buffer_load_dwordx4 v[52:55], v5, s[8:11], 0 offen")
    e("  buffer_load_dwordx4 v[56:59], v5, s[8:11], 0 offen offset:16")

    srd(8, 38, 524288)
    dma(0); dma(1)
    for st in range(8):
        e(f"  s_waitcnt vmcnt({10 if st < 7 else 0})")
        e("  s_barrier")
        if st + 2 < 8: dma(st + 2)
    e("  s_waitcnt vmcnt(0)")
    e("  v_lshlrev_b32 v80, 16, v80")
    e("  v_lshlrev_b32 v81, 16, v81")
    e("  v_lshlrev_b32 v82, 16, v82")
    e(f"  v_mov_b32 v6, 0x{f2u(LOG2E):08x}")
    e("  v_mul_f32 v82, v82, v6")
    e("  v_exp_f32 v82, v82")
    e("  s_nop 0")
    bf16r(82)
    e("  v_mul_f32 v83, v82, v80")
    e("  v_mul_f32 v7, v82, v81")
    e("  v_mul_f32 v83, v83, v6")
    e(f"  v_mov_b32 v6, 0x{f2u(INV2PI):08x}")
    e("  v_mul_f32 v7, v7, v6")
    lam_setup(83, 7, 1, 116, 117, 8, 9)
    lam_setup(83, 7, 16, 118, 119, 8, 9)
    e("  v_mul_f32 v8, v80, v80")
    e("  v_fma_f32 v8, v81, v81, v8")
    e("  v_rcp_f32 v8, v8")
    e("  v_add_f32 v9, -1.0, v116")
    e("  v_mul_f32 v120, v9, v80")
    e("  v_fma_f32 v120, v117, v81, v120")
    e("  v_mul_f32 v121, v117, v80")
    e("  v_fma_f32 v121, -v9, v81, v121")
    e("  v_mul_f32 v120, v120, v8")
    e("  v_mul_f32 v121, v121, v8")


    e("  v_mov_b32 v8, 0")
    e("  s_waitcnt vmcnt(0)")
    for q in range(8):
        for h in range(2):
            if h == 0:
                e(f"  v_lshlrev_b32 v60, 16, v{44 + q}")
                e(f"  v_lshlrev_b32 v61, 16, v{52 + q}")
            else:
                e(f"  v_and_b32 v60, 0xffff0000, v{44 + q}")
                e(f"  v_and_b32 v61, 0xffff0000, v{52 + q}")
            e("  v_mul_f32 v60, v60, v61")
            bf16r(60)
            e("  v_add_f32 v8, v8, v60")
    for off in (0x041F, 0x081F, 0x101F, 0x201F, 0x401F):
        e(f"  ds_swizzle_b32 v9, v8 offset:{off}")
        e("  s_waitcnt lgkmcnt(0)")
        e("  v_add_f32 v8, v8, v9")
    bf16r(8)
    e("  v_mul_f32 v8, v8, v6") if False else None
    e(f"  v_mov_b32 v9, 0x{f2u(-LOG2E):08x}")
    e("  v_mul_f32 v8, v8, v9")
    e("  v_exp_f32 v8, v8")
    e("  s_nop 0")
    e("  v_add_f32 v8, 1.0, v8")
    e("  v_rcp_f32 v8, v8")
    e("  s_nop 0")
    bf16r(8)
    e("  s_lshl_b32 s47, s35, 9")
    e("  s_lshl_b32 s48, s36, 5")
    e("  s_add_u32 s47, s47, s48")
    e(f"  s_add_u32 s47, s47, {WS_G}")
    e("  v_lshlrev_b32 v5, 2, v3")
    e("  v_cmp_eq_u32 vcc, 0, v2")
    e("  s_and_saveexec_b64 s[50:51], vcc")
    e("  buffer_store_dword v8, v5, s[20:23], s47 offen")
    e("  s_mov_b64 exec, s[50:51]")
    e("  s_waitcnt vmcnt(0)")


    e("  s_barrier")
    e("  s_barrier")
    e("  s_movk_i32 s48, 4352")
    e("  v_mul_lo_u32 v5, v3, s48")
    e("  v_lshl_add_u32 v5, v2, 2, v5")
    for j in range(16):
        e(f"  ds_read_b32 v{84 + j}, v5 offset:{j * 272}")
        e(f"  ds_read_b32 v{100 + j}, v5 offset:{j * 272 + 128}")

    e("  s_waitcnt lgkmcnt(0)")
    for j in range(16):
        xr = 84 + j; xi = 100 + j
        e(f"  v_mul_f32 v8, v120, v{xr}")
        e(f"  v_fma_f32 v8, -v121, v{xi}, v8")
        e(f"  v_mul_f32 v9, v120, v{xi}")
        e(f"  v_fma_f32 v9, v121, v{xr}, v9")
        if j > 0:
            e(f"  v_fma_f32 v8, v116, v{xr-1}, v8")
            e(f"  v_fma_f32 v8, -v117, v{xi-1}, v8")
            e(f"  v_fma_f32 v9, v116, v{xi-1}, v9")
            e(f"  v_fma_f32 v9, v117, v{xr-1}, v9")
        e(f"  v_mov_b32 v{xr}, v8")
        e(f"  v_mov_b32 v{xi}, v9")
    ES = 34816
    e("  v_mov_b32 v122, v99"); e("  v_mov_b32 v123, v115")
    e("  v_lshlrev_b32 v5, 3, v0")
    e(f"  ds_write_b64 v5, v[122:123] offset:{ES}")
    e("  s_waitcnt lgkmcnt(0)")
    e("  s_barrier")
    e("  v_lshlrev_b32 v5, 3, v2")
    for sp in range(7):
        e(f"  ds_read_b64 v[{44 + 2 * sp}:{45 + 2 * sp}], v5 offset:{ES + 256 * sp}")
    e("  v_mov_b32 v122, 0"); e("  v_mov_b32 v123, 0")
    e("  s_waitcnt lgkmcnt(0)")
    for sp in range(7):
        er = 44 + 2 * sp; ei = er + 1
        e(f"  v_fma_f32 v8, v118, v122, v{er}")
        e(f"  v_fma_f32 v8, -v119, v123, v8")
        e(f"  v_fma_f32 v9, v118, v123, v{ei}")
        e(f"  v_fma_f32 v9, v119, v122, v9")
        e(f"  v_cmp_lt_u32 vcc, {sp}, v3")
        e("  s_nop 1")
        e("  v_cndmask_b32 v122, v122, v8, vcc")
        e("  v_cndmask_b32 v123, v123, v9, vcc")
    e("  s_lshl_b32 s47, s35, 18")
    e("  s_lshl_b32 s48, s36, 7")
    e("  s_add_u32 s47, s47, s48")
    e("  s_add_u32 s48, s47, %d" % WS_HLIM)
    e("  v_lshlrev_b32 v5, 15, v3")
    e("  v_lshl_add_u32 v5, v2, 2, v5")
    for j in range(16):
        xr = 84 + j; xi = 100 + j
        e("  v_mul_f32 v8, v116, v122")
        e("  v_fma_f32 v8, -v117, v123, v8")
        e("  v_mul_f32 v9, v116, v123")
        e("  v_fma_f32 v123, v117, v122, v9")
        e("  v_mov_b32 v122, v8")
        e(f"  v_add_f32 v{xr}, v{xr}, v122")
        e(f"  v_add_f32 v{xi}, v{xi}, v123")
        if j % 2 == 0 and j > 0:
            e("  v_add_u32 v5, 4096, v5")
        e(f"  buffer_store_dword v{xr}, v5, s[20:23], s47 offen offset:{(j % 2) * 2048}")
        e(f"  buffer_store_dword v{xi}, v5, s[20:23], s48 offen offset:{(j % 2) * 2048}")
    e("  v_mov_b32 v122, v99"); e("  v_mov_b32 v123, v115")
    e("  s_lshl_b32 s47, s35, 12")
    e("  s_lshl_b32 s48, s36, 8")
    e("  s_add_u32 s47, s47, s48")
    e(f"  s_add_u32 s47, s47, {WS_E}")
    e("  v_lshlrev_b32 v5, 3, v2")
    e("  v_cmp_eq_u32 vcc, 7, v3")
    e("  s_and_saveexec_b64 s[50:51], vcc")
    e("  buffer_store_dwordx2 v[122:123], v5, s[20:23], s47 offen")
    e("  s_mov_b64 exec, s[50:51]")
    e("  s_endpgm")
    e("K1_COMP:")
    stamp()
    e("  s_load_dwordx2 s[24:25], s[0:1], 88")
    e("  s_waitcnt lgkmcnt(0)")
    srd(8, 24, 3584)
    e("  s_mul_i32 s47, s36, 224")
    e("  v_and_b32 v6, 15, v1")
    e("  v_lshlrev_b32 v5, 1, v6")
    for c3 in range(7):
        e(f"  buffer_load_ushort v{224 + c3}, v5, s[8:11], s47 offen offset:{32 * c3}")
    e("  s_barrier")
    reads(0, 0)
    for st in range(8):
        e("  s_waitcnt lgkmcnt(0)")
        reads(1, 1)
        mfmas(0)
        e("  s_waitcnt lgkmcnt(0)")
        if st + 1 < 8:
            e("  s_barrier")
            d = SLOT if (st + 1) % 3 != 0 else -2 * SLOT
            for r in range(14, 25):
                e(f"  v_add_u32 v{r}, {d}, v{r}")
            reads(0, 0)
        mfmas(1)
        if st in (0, 1, 3): stamp()
    e("  s_nop 7"); e("  s_nop 7")
    e("  s_barrier")
    stamp()
    e("  v_lshlrev_b32 v5, 2, v4")
    e("  s_lshl_b32 s47, s34, 5")
    e("  v_add_u32 v5, s47, v5")
    e("  s_movk_i32 s48, 272")
    e("  v_mul_lo_u32 v5, v5, s48")
    e("  v_and_b32 v6, 15, v1")
    e("  v_lshl_add_u32 v26, v6, 2, v5")
    for i2 in range(2):
        for c2 in range(4):
            for j in range(4):
                e(f"  ds_write_b32 v26, v{ACC(i2, c2) + j} offset:{(16 * i2 + j) * 272 + 64 * c2}")

    e("  s_waitcnt lgkmcnt(0)")
    e("  s_barrier")
    H1S = 36864
    e("  v_lshlrev_b32 v5, 2, v4")
    e("  s_lshl_b32 s47, s34, 5")
    e("  v_add_u32 v5, s47, v5")
    e("  s_movk_i32 s48, 240")
    e("  v_mul_lo_u32 v5, v5, s48")
    e("  v_lshl_add_u32 v27, v6, 1, v5")
    e("  s_waitcnt vmcnt(0)")
    for c3 in range(7):
        e(f"  v_lshlrev_b32 v{32 + c3}, 16, v{224 + c3}")
    C1 = 0.7978845608028654; C3 = 0.044715
    e(f"  v_mov_b32 v40, 0x{f2u(C3):08x}")
    e(f"  v_mov_b32 v41, 0x{f2u(-2.0 * C1 * LOG2E):08x}")
    e(f"  v_mov_b32 v40, 0x{f2u(C3 * (-2.0 * C1 * LOG2E)):08x}"); e("  v_mov_b32 v41, v40")
    e(f"  v_mov_b32 v42, 0x{f2u(-2.0 * C1 * LOG2E):08x}"); e("  v_mov_b32 v43, v42")
    e("  v_mov_b32 v58, 1.0"); e("  v_mov_b32 v59, 1.0")
    for c3 in range(7):
        e(f"  v_mov_b32 v{60 + 2 * c3}, v{32 + c3}"); e(f"  v_mov_b32 v{61 + 2 * c3}, v{32 + c3}")
    for i2 in range(2):
        for c3 in range(7):
            P = [ACC(i2, 4 + c3), ACC(i2, 4 + c3) + 2]
            T = [44, 46]; U = [48, 49]
            for p, u in zip(P, U): e(f"  v_cvt_pk_bf16_f32 v{u}, v{p}, v{p+1}")
            for p, u in zip(P, U): e(f"  v_lshlrev_b32 v{p}, 16, v{u}")
            for p, u in zip(P, U): e(f"  v_and_b32 v{p+1}, 0xffff0000, v{u}")
            for p in P: e(f"  v_pk_add_f32 v[{p}:{p+1}], v[{p}:{p+1}], v[{60 + 2 * c3}:{61 + 2 * c3}]")
            for p, u in zip(P, U): e(f"  v_cvt_pk_bf16_f32 v{u}, v{p}, v{p+1}")
            for p, u in zip(P, U): e(f"  v_lshlrev_b32 v{p}, 16, v{u}")
            for p, u in zip(P, U): e(f"  v_and_b32 v{p+1}, 0xffff0000, v{u}")
            for p, t in zip(P, T): e(f"  v_pk_mul_f32 v[{t}:{t+1}], v[{p}:{p+1}], v[{p}:{p+1}]")
            for p, t in zip(P, T): e(f"  v_pk_fma_f32 v[{t}:{t+1}], v[{t}:{t+1}], v[40:41], v[42:43]")
            for p, t in zip(P, T): e(f"  v_pk_mul_f32 v[{t}:{t+1}], v[{t}:{t+1}], v[{p}:{p+1}]")
            for t in T:
                e(f"  v_exp_f32 v{t}, v{t}"); e(f"  v_exp_f32 v{t+1}, v{t+1}")
            for t in T: e(f"  v_pk_add_f32 v[{t}:{t+1}], v[{t}:{t+1}], v[58:59]")
            for t in T:
                e(f"  v_rcp_f32 v{t}, v{t}"); e(f"  v_rcp_f32 v{t+1}, v{t+1}")
            e("  s_nop 0")
            for p, t in zip(P, T): e(f"  v_pk_mul_f32 v[{p}:{p+1}], v[{p}:{p+1}], v[{t}:{t+1}]")
            for p, u in zip(P, U): e(f"  v_cvt_pk_bf16_f32 v{u}, v{p}, v{p+1}")
            for k, u in enumerate(U):
                e(f"  ds_write_b16 v27, v{u} offset:{H1S + (16 * i2 + 2 * k) * 240 + 32 * c3}")
                e(f"  ds_write_b16_d16_hi v27, v{u} offset:{H1S + (16 * i2 + 2 * k + 1) * 240 + 32 * c3}")
    e("  s_waitcnt lgkmcnt(0)")
    e("  s_barrier")
    stamp()
    e("  s_mul_i32 s47, s35, 720896")
    e("  s_mul_i32 s48, s36, 224")
    e("  s_add_u32 s47, s47, s48")
    e(f"  s_add_u32 s47, s47, {WS_A2 + 2048}")
    e("  s_mov_b32 s48, 0x12492493")
    for q in range(7):
        e(f"  v_add_u32 v5, {256 * q}, v0")
        e("  v_mul_hi_u32 v6, v5, s48")
        e("  v_mul_u32_u24 v7, 14, v6")
        e("  v_sub_u32 v7, v5, v7")
        e("  s_movk_i32 s49, 240")
        e("  v_mul_lo_u32 v8, v6, s49")
        e("  v_lshl_add_u32 v8, v7, 4, v8")
        e(f"  ds_read_b128 v[{44 + 4 * q}:{47 + 4 * q}], v8 offset:{H1S}")
        e("  s_movk_i32 s49, 5632")
        e("  v_mul_lo_u32 v8, v6, s49")
        e(f"  v_lshl_add_u32 v{72 + q}, v7, 4, v8")
    e("  s_waitcnt lgkmcnt(0)")
    for q in range(7):
        e(f"  buffer_store_dwordx4 v[{44 + 4 * q}:{47 + 4 * q}], v{72 + q}, s[20:23], s47 offen")
    e("  s_waitcnt vmcnt(0)")
    stamp()
    stamp_flush(1)
    e("K1_END:")
    e("  s_endpgm")

def k2():
    e(".p2align 8")
    e(".globl k2_kernel")
    e(".type k2_kernel,@function")
    e("k2_kernel:")
    e("  s_cmp_ge_u32 s2, 256")
    e("  s_cbranch_scc1 K2_END")
    e("  s_load_dwordx2 s[24:25], s[0:1], 8")
    e("  s_load_dwordx2 s[26:27], s[0:1], 16")
    e("  s_load_dwordx2 s[28:29], s[0:1], 56")
    e("  s_load_dwordx2 s[32:33], s[0:1], 136")
    e("  s_and_b32 s34, s2, 1")
    e("  s_lshr_b32 s35, s2, 1")
    e("  s_and_b32 s35, s35, 7")
    e("  s_lshr_b32 s36, s2, 4")
    e("  s_waitcnt lgkmcnt(0)")
    srd(20, 32, WS_BYTES)
    e("  s_lshl_b32 s47, s34, 8")
    e("  v_add_u32 v2, s47, v0")
    e("  v_lshlrev_b32 v5, 1, v2")
    srd(8, 24, 1024)
    e("  buffer_load_ushort v80, v5, s[8:11], 0 offen")
    srd(8, 26, 1024)
    e("  buffer_load_ushort v81, v5, s[8:11], 0 offen")
    srd(8, 28, 1024)
    e("  buffer_load_ushort v82, v5, s[8:11], 0 offen")
    e("  v_lshlrev_b32 v5, 3, v2")
    e(f"  s_mov_b32 s47, {WS_E}")
    for cp in range(15):
        e(f"  buffer_load_dwordx2 v[{84 + 2 * cp}:{85 + 2 * cp}], v5, s[20:23], s47 offen")
        e("  s_add_u32 s47, s47, 4096")
    e("  s_lshl_b32 s47, s36, 18")
    e("  s_lshl_b32 s48, s35, 15")
    e("  s_add_u32 s47, s47, s48")
    e(f"  s_add_u32 s48, s47, {WS_HLIM}")
    e("  v_lshlrev_b32 v6, 2, v2")
    e("  v_mov_b32 v7, v6")
    for j in range(16):
        if j % 2 == 0 and j > 0: e("  v_add_u32 v7, 4096, v7")
        e(f"  buffer_load_dword v{116 + j}, v7, s[20:23], s47 offen offset:{(j % 2) * 2048}")
        e(f"  buffer_load_dword v{132 + j}, v7, s[20:23], s48 offen offset:{(j % 2) * 2048}")
    e("  s_waitcnt vmcnt(32)")
    e("  v_lshlrev_b32 v80, 16, v80")
    e("  v_lshlrev_b32 v81, 16, v81")
    e("  v_lshlrev_b32 v82, 16, v82")
    e(f"  v_mov_b32 v6, 0x{f2u(LOG2E):08x}")
    e("  v_mul_f32 v82, v82, v6")
    e("  v_exp_f32 v82, v82")
    e("  s_nop 0")
    bf16r(82)
    e("  v_mul_f32 v83, v82, v80")
    e("  v_mul_f32 v3, v82, v81")
    e("  v_mul_f32 v83, v83, v6")
    e(f"  v_mov_b32 v6, 0x{f2u(INV2PI):08x}")
    e("  v_mul_f32 v3, v3, v6")
    lam_setup(83, 3, 1, 150, 151, 8, 9)
    lam_setup(83, 3, 128, 152, 153, 8, 9)
    e("  s_lshl_b32 s49, s35, 4")
    e("  v_cvt_f32_u32 v4, s49")
    e("  v_mul_f32 v10, v83, v4")
    e("  v_mul_f32 v11, v3, v4")
    lam_setup(10, 11, 1, 154, 155, 8, 9)
    e("  v_mov_b32 v156, 0"); e("  v_mov_b32 v157, 0")
    for cp in range(15):
        er = 84 + 2 * cp; ei = er + 1
        e(f"  s_cmp_lt_u32 {cp}, s36")
        e(f"  s_cbranch_scc0 K2_HD")
        e(f"  v_fma_f32 v8, v152, v156, v{er}")
        e(f"  v_fma_f32 v8, -v153, v157, v8")
        e(f"  v_fma_f32 v9, v152, v157, v{ei}")
        e(f"  v_fma_f32 v157, v153, v156, v9")
        e(f"  v_mov_b32 v156, v8")
    e("K2_HD:")
    e("  v_mul_f32 v8, v154, v156")
    e("  v_fma_f32 v8, -v155, v157, v8")
    e("  v_mul_f32 v9, v154, v157")
    e("  v_fma_f32 v157, v155, v156, v9")
    e("  v_mov_b32 v156, v8")
    e("  s_lshl_b32 s47, s36, 7")
    e("  s_lshl_b32 s48, s35, 4")
    e("  s_add_u32 s47, s47, s48")
    e("  s_mul_i32 s47, s47, 5632")
    e(f"  s_add_u32 s47, s47, {WS_A2}")
    e("  v_lshlrev_b32 v7, 1, v2")
    e("  s_waitcnt vmcnt(0)")
    for j in range(16):
        e("  v_mul_f32 v8, v150, v156")
        e("  v_fma_f32 v8, -v151, v157, v8")
        e("  v_mul_f32 v9, v150, v157")
        e("  v_fma_f32 v157, v151, v156, v9")
        e("  v_mov_b32 v156, v8")
        e(f"  v_add_f32 v{116 + j}, v{116 + j}, v156")
        e(f"  v_add_f32 v{132 + j}, v{132 + j}, v157")
        e(f"  v_sub_f32 v{132 + j}, 0, v{132 + j}")
        e(f"  v_cvt_pk_bf16_f32 v{116 + j}, v{116 + j}, v{116 + j}")
        e(f"  v_cvt_pk_bf16_f32 v{132 + j}, v{132 + j}, v{132 + j}")
        e(f"  buffer_store_short v{116 + j}, v7, s[20:23], s47 offen")
        e(f"  buffer_store_short v{132 + j}, v7, s[20:23], s47 offen offset:1024")
        e("  s_add_u32 s47, s47, 5632")
    e("K2_END:")
    e("  s_endpgm")

def k3():
    e(".p2align 8")
    e(".globl k3_kernel")
    e(".type k3_kernel,@function")
    e("k3_kernel:")
    e("  s_cmp_ge_u32 s2, 256")
    e("  s_cbranch_scc1 K3_END")
    e("  s_load_dwordx2 s[24:25], s[0:1], 40")
    e("  s_load_dwordx2 s[26:27], s[0:1], 48")
    e("  s_load_dwordx2 s[28:29], s[0:1], 96")
    e("  s_load_dwordx2 s[32:33], s[0:1], 136")
    e("  v_lshrrev_b32 v1, 6, v0")
    e("  s_nop 0")
    e("  v_readfirstlane_b32 s34, v1")
    e("  s_lshr_b32 s57, s34, 2")
    e("  s_and_b32 s34, s34, 3")
    e("  s_and_b32 s35, s2, 7")
    e("  s_lshl_b32 s35, s35, 2")
    e("  s_lshr_b32 s36, s2, 6")
    e("  s_add_u32 s35, s35, s36")
    e("  s_lshr_b32 s36, s2, 3")
    e("  s_and_b32 s36, s36, 7")
    e("  s_waitcnt lgkmcnt(0)")
    srd(8, 24, 524288); srd(12, 26, 524288); srd(16, 28, 1792 * 512 * 2); srd(20, 32, WS_BYTES)
    e("  v_and_b32 v1, 63, v0")
    e("  v_lshrrev_b32 v4, 4, v1")
    e("  v_and_b32 v5, 15, v1")
    e("  s_lshl_b32 s47, s34, 2")
    e("  v_add_u32 v6, s47, v4")
    e("  v_xor_b32 v6, v6, v5")
    e("  v_lshlrev_b32 v6, 4, v6")
    e("  s_movk_i32 s48, 5632")
    e("  v_mul_lo_u32 v7, v4, s48")
    e("  v_add_u32 v10, v6, v7")
    e("  v_lshl_add_u32 v11, v4, 10, v6")
    e("  v_lshrrev_b32 v6, 3, v1")
    e("  v_and_b32 v7, 1, v4")
    e("  v_lshlrev_b32 v7, 2, v7")
    e("  v_and_b32 v8, 7, v1")
    e("  v_xor_b32 v7, v7, v8")
    e("  v_lshlrev_b32 v7, 4, v7")
    e("  v_lshl_add_u32 v12, v6, 10, v7")
    e("  s_lshl_b32 s40, s35, 6")
    e("  s_add_u32 s40, s40, s47")
    e("  s_mul_i32 s40, s40, 5632")
    e(f"  s_add_u32 s40, s40, {WS_A2}")
    e("  s_lshl_b32 s41, s36, 6")
    e("  s_add_u32 s41, s41, s47")
    e("  s_lshl_b32 s41, s41, 10")
    e("  s_lshl_b32 s42, s34, 13")
    e("  s_lshl_b32 s43, s36, 7")
    e("  s_add_u32 s42, s42, s43")
    e("  s_lshl_b32 s44, s34, 10")
    e("  s_lshl_b32 s45, s34, 10")
    SLOT = 32768; NS = 5
    e("  s_lshr_b32 s52, s2, 3")
    def dma(st):
        slot = (st % NS) * SLOT
        if st < 8:
            e(f"  s_add_u32 s53, s52, {st}")
            e("  s_and_b32 s53, s53, 3")
            e("  s_lshl_b32 s53, s53, 8")
            e(f"  s_add_u32 s54, s53, {1024 if st >= 4 else 0}")
        else:
            e(f"  s_add_u32 s53, s52, {st - 8}")
            e("  s_mul_hi_u32 s54, s53, 0x12492493")
            e("  s_mul_i32 s54, s54, 14")
            e("  s_sub_u32 s53, s53, s54")
            e("  s_lshl_b32 s54, s53, 8")
            e("  s_add_u32 s54, s54, 2048")
            e("  s_lshl_b32 s53, s53, 17")
        e("  s_add_u32 s55, s40, s54")
        e("  s_add_u32 s56, s41, s53") if st < 8 else e("  s_add_u32 s56, s42, s53")
        for j in range(4):
            e(f"  s_add_u32 s47, s55, {16 * j * 5632}")
            e(f"  s_add_u32 m0, s44, {slot + j * 4096}")
            e("  s_nop 0")
            e("  buffer_load_dwordx4 v10, s[20:23], s47 offen lds")
        for j in range(4):
            if st < 8:
                e(f"  s_add_u32 s47, s56, {16 * j * 1024}")
                e(f"  s_add_u32 m0, s44, {slot + 16384 + j * 4096}")
                e("  s_nop 0")
                e(f"  buffer_load_dwordx4 v11, s[{8 if st < 4 else 12}:{11 if st < 4 else 15}], s47 offen lds")
            else:
                e(f"  s_add_u32 s47, s56, {32 * j * 1024}")
                e(f"  s_add_u32 m0, s45, {slot + 16384 + j * 4096}")
                e("  s_nop 0")
                e("  buffer_load_dwordx4 v12, s[16:19], s47 offen lds")
    e("  v_and_b32 v5, 31, v1")
    e("  v_lshrrev_b32 v6, 5, v1")
    e("  s_lshl_b32 s47, s34, 2")
    e("  v_add_u32 v6, s47, v6")
    e("  v_and_b32 v7, 15, v1")
    e("  v_xor_b32 v6, v6, v7")
    e("  v_lshlrev_b32 v6, 4, v6")
    e("  v_lshl_add_u32 v14, v5, 8, v6")
    e("  v_xor_b32 v15, 32, v14")
    e("  v_lshrrev_b32 v5, 2, v1")
    e("  v_and_b32 v5, 3, v5")
    e("  v_and_b32 v6, 3, v1")
    e("  v_lshrrev_b32 v7, 1, v4")
    e("  v_lshl_add_u32 v7, v7, 3, v5")
    e("  s_lshl_b32 s47, s34, 5")
    e("  v_add_u32 v7, s47, v7")
    e("  v_lshlrev_b32 v7, 7, v7")
    e("  v_and_b32 v8, 1, v4")
    e("  v_lshlrev_b32 v8, 1, v8")
    e("  v_lshrrev_b32 v9, 1, v6")
    e("  v_add_u32 v8, v8, v9")
    e("  v_lshrrev_b32 v9, 1, v5")
    e("  v_lshlrev_b32 v9, 2, v9")
    e("  v_xor_b32 v8, v8, v9")
    e("  v_lshl_add_u32 v7, v8, 4, v7")
    e("  v_and_b32 v9, 1, v6")
    e("  v_lshl_add_u32 v16, v9, 3, v7")
    e("  v_add_u32 v16, 16384, v16")
    e("  v_xor_b32 v17, 64, v16")
    for r in range(128, 256):
        e(f"  v_mov_b32 v{r}, 0")
    def freads(st, fs):
        for m in range(2):
            fb = 32 + 32 * fs + 16 * m
            for a in range(2):
                e(f"  ds_read_b128 v[{fb + 4 * a}:{fb + 4 * a + 3}], v{14 + m} offset:{a * 8192}")
            for b2 in range(2):
                if st < 8:
                    e(f"  ds_read_b128 v[{fb + 8 + 4 * b2}:{fb + 8 + 4 * b2 + 3}], v{14 + m} offset:{16384 + b2 * 8192}")
                else:
                    e(f"  ds_read_b64_tr_b16 v[{fb + 8 + 4 * b2}:{fb + 8 + 4 * b2 + 1}], v{16 + b2} offset:{m * 2048}")
                    e(f"  ds_read_b64_tr_b16 v[{fb + 8 + 4 * b2 + 2}:{fb + 8 + 4 * b2 + 3}], v{16 + b2} offset:{m * 2048 + 512}")
    def adv(st):
        d = SLOT if st % NS != 0 else -(NS - 1) * SLOT
        for r in range(14, 18):
            e(f"  v_add_u32 v{r}, {d}, v{r}")
    e("  s_cmp_eq_u32 s57, 0")
    e("  s_cbranch_scc1 K3_COMP")
    dma(0); dma(1); dma(2); dma(3)
    e("  s_waitcnt vmcnt(24)")
    e("  s_barrier")
    for st in range(21):
        rem = min(22, st + 4) - (st + 2)
        e(f"  s_waitcnt vmcnt({8 * max(rem, 0)})")
        e("  s_barrier")
        if st + 4 < 22: dma(st + 4)
    e("  s_endpgm")
    e("K3_COMP:")
    e("  s_load_dwordx2 s[24:25], s[0:1], 0")
    e("  s_load_dwordx2 s[26:27], s[0:1], 64")
    e("  s_load_dwordx2 s[28:29], s[0:1], 104")
    e("  s_load_dwordx2 s[30:31], s[0:1], 120")
    e("  s_waitcnt lgkmcnt(0)")
    srd(4, 24, 2097152); srd(8, 26, 1024); srd(12, 28, 1024); srd(16, 30, 4194304)
    e("  v_lshrrev_b32 v2, 2, v0")
    e("  v_and_b32 v3, 3, v0")
    e("  v_lshlrev_b32 v5, 5, v3")
    e("  v_lshl_add_u32 v6, v2, 10, v5")
    e("  s_lshl_b32 s47, s35, 16")
    e("  s_lshl_b32 s48, s36, 7")
    e("  s_add_u32 s47, s47, s48")
    e("  buffer_load_dwordx4 v[96:99], v6, s[4:7], s47 offen")
    e("  buffer_load_dwordx4 v[100:103], v6, s[4:7], s47 offen offset:16")
    e("  buffer_load_dwordx4 v[104:107], v5, s[8:11], s48 offen")
    e("  buffer_load_dwordx4 v[108:111], v5, s[8:11], s48 offen offset:16")
    e("  buffer_load_dwordx4 v[112:115], v5, s[12:15], s48 offen")
    e("  buffer_load_dwordx4 v[116:119], v5, s[12:15], s48 offen offset:16")
    e("  v_lshlrev_b32 v7, 2, v2")
    e("  s_lshl_b32 s49, s35, 8")
    e(f"  s_add_u32 s49, s49, {WS_G}")
    e("  buffer_load_dword v120, v7, s[20:23], s49 offen")
    e("  s_barrier")
    freads(0, 0)
    for st in range(22):
        if st + 1 < 22:
            e("  s_waitcnt lgkmcnt(0)")
            e("  s_barrier")
            adv(st + 1)
            freads(st + 1, (st + 1) & 1)
        else:
            e("  s_waitcnt lgkmcnt(0)")
        base = 128 if st < 8 else 192
        for m in range(2):
            fb = 32 + 32 * (st & 1) + 16 * m
            for a in range(2):
                for b2 in range(2):
                    ac = base + (a * 2 + b2) * 16
                    e(f"  v_mfma_f32_32x32x16_bf16 v[{ac}:{ac+15}], v[{fb + 4 * a}:{fb + 4 * a + 3}], v[{fb + 8 + 4 * b2}:{fb + 8 + 4 * b2 + 3}], v[{ac}:{ac+15}]")
    e("  s_nop 7"); e("  s_nop 7"); e("  s_nop 7")
    e("  s_barrier")
    e("  v_lshrrev_b32 v5, 5, v1")
    e("  v_lshlrev_b32 v5, 10, v5")
    e("  v_and_b32 v6, 31, v1")
    e("  v_lshl_add_u32 v5, v6, 2, v5")
    e("  s_lshl_b32 s47, s34, 15")
    e("  v_add_u32 v5, s47, v5")
    for st_ in range(2):
        for a in range(2):
            for b2 in range(2):
                for i in range(4):
                    for j in range(4):
                        r = 128 + 64 * st_ + (a * 2 + b2) * 16 + 4 * i + j
                        e(f"  ds_write_b32 v5, v{r} offset:{st_ * 16384 + (32 * a + 8 * i + j) * 256 + 128 * b2}")
    e("  s_waitcnt lgkmcnt(0)")
    e("  s_barrier")
    e("  v_lshrrev_b32 v2, 2, v0")
    e("  v_and_b32 v3, 3, v0")
    e("  v_lshlrev_b32 v5, 6, v3")
    e("  v_lshl_add_u32 v5, v2, 8, v5")
    for w in range(4):
        for st_ in range(2):
            for qd in range(4):
                dst = (32 if w == 0 else 64) + st_ * 16 + qd * 4
                off = (w * 2 + st_) * 16384 + qd * 16
                if off > 65535:
                    e(f"  v_add_u32 v8, {off}, v5")
                    e(f"  ds_read_b128 v[{dst}:{dst+3}], v8")
                else:
                    e(f"  ds_read_b128 v[{dst}:{dst+3}], v5 offset:{off}")
        if w > 0:
            e("  s_waitcnt lgkmcnt(0)")
            for k in range(32):
                e(f"  v_add_f32 v{32 + k}, v{32 + k}, v{64 + k}")
    e("  s_waitcnt vmcnt(0)")
    e("  v_sub_f32 v121, 1.0, v120")
    bf16r(121)
    for k0 in range(0, 16, 4):
        ks = list(range(k0, k0 + 4))
        for k in ks:
            q = k // 2; h = k % 2
            for (src, dst) in ((96, 64 + k), (104, 80 + k), (112, 122 + (k - k0))):
                if h == 0: e(f"  v_lshlrev_b32 v{dst}, 16, v{src + q}")
                else: e(f"  v_and_b32 v{dst}, 0xffff0000, v{src + q}")
        for k in ks: e(f"  v_mul_f32 v{64 + k}, v{64 + k}, v{80 + k}")
        for k in ks: e(f"  v_cvt_pk_bf16_f32 v{64 + k}, v{64 + k}, v{64 + k}")
        for k in ks: e(f"  v_lshlrev_b32 v{64 + k}, 16, v{64 + k}")
        for k in ks: e(f"  v_fma_f32 v{64 + k}, 2.0, v{32 + k}, v{64 + k}")
        for k in ks: e(f"  v_mul_f32 v{64 + k}, v{64 + k}, v120")
        for k in ks: e(f"  v_cvt_pk_bf16_f32 v{48 + k}, v{48 + k}, v{48 + k}")
        for k in ks: e(f"  v_lshlrev_b32 v{48 + k}, 16, v{48 + k}")
        for k in ks: e(f"  v_add_f32 v{48 + k}, v{48 + k}, v{122 + (k - k0)}")
        for k in ks: e(f"  v_cvt_pk_bf16_f32 v{48 + k}, v{48 + k}, v{48 + k}")
        for k in ks: e(f"  v_lshlrev_b32 v{48 + k}, 16, v{48 + k}")
        for k in ks: e(f"  v_mul_f32 v{48 + k}, v{48 + k}, v121")
        for k in ks: e(f"  v_cvt_pk_bf16_f32 v{48 + k}, v{48 + k}, v{48 + k}")
        for k in ks: e(f"  v_lshlrev_b32 v{48 + k}, 16, v{48 + k}")
        for k in ks: e(f"  v_add_f32 v{32 + k}, v{64 + k}, v{48 + k}")
    e("  v_lshlrev_b32 v5, 6, v3")
    e("  v_lshl_add_u32 v5, v2, 11, v5")
    e("  s_lshl_b32 s47, s35, 17")
    e("  s_lshl_b32 s48, s36, 8")
    e("  s_add_u32 s47, s47, s48")
    for qd in range(4):
        e(f"  buffer_store_dwordx4 v[{32 + 4 * qd}:{35 + 4 * qd}], v5, s[16:19], s47 offen offset:{16 * qd}")
    e("K3_END:")
    e("  s_endpgm")

def kd(name, vgpr, lds_unused=0):
    e(".section .rodata,\"a\"")
    e(".p2align 6")
    e(f".amdhsa_kernel {name}")
    e(f"  .amdhsa_next_free_vgpr {vgpr}")
    e("  .amdhsa_next_free_sgpr 96")
    e(f"  .amdhsa_accum_offset {min(256, (vgpr + 3) // 4 * 4)}")
    e("  .amdhsa_group_segment_fixed_size 0")
    e("  .amdhsa_kernarg_size 144")
    e("  .amdhsa_user_sgpr_count 2")
    e("  .amdhsa_user_sgpr_kernarg_segment_ptr 1")
    e("  .amdhsa_system_sgpr_workgroup_id_x 1")
    e(".end_amdhsa_kernel")
    e(".text")

hdr = ["; @launch kernel=k1_kernel grid=(256,1,1) block=(512,1,1) lds=122880", "; @launch kernel=k2_kernel grid=(256,1,1) block=(256,1,1) lds=0", "; @launch kernel=k3_kernel grid=(256,1,1) block=(512,1,1) lds=163840"]
for h in hdr: e(h)
e('.amdgcn_target "amdgcn-amd-amdhsa--gfx950"')
e(".text")
k1()
k2()
k3()
kd("k1_kernel", 232)
kd("k2_kernel", 160)
kd("k3_kernel", 256)
print("\n".join(L))
```
